```python
import torch

def _softmax(x, axis=-1):
    return torch.softmax(x, dim=axis)
def _gelu(x):
    return torch.nn.functional.gelu(x, approximate="tanh")
def _silu(x):
    return torch.nn.functional.silu(x)
def _sigmoid(x):
    return torch.sigmoid(x)
def _layernorm(x, axis=-1, eps=1e-5):
    m = x.mean(dim=axis, keepdim=True)
    v = x.var(dim=axis, keepdim=True, unbiased=False)
    return (x - m) / torch.sqrt(v + eps)
def _scatter_add(tgt, idx, src, axis=0):
    return tgt.clone().index_add_(axis, idx, src)
def _segment_sum(src, seg, n):
    out = torch.zeros((n,) + src.shape[1:], dtype=src.dtype)
    return out.index_add_(0, seg, src)
def _pad(x, pw):
    flat = tuple(v for pair in reversed(pw) for v in pair)
    return torch.nn.functional.pad(x, flat)

kernel_name = 'recurrent_scan__linear_attn_block__swiglu_ffn__prompt'

def setup_inputs():

    _w = (lambda a: (lambda t: t.to(torch.bfloat16) if t.is_floating_point() else t)(torch.as_tensor(a)))
    def _A_setup():
        B, S, D = 1, 2048, 640
        return {
            "x": _w((lambda *s: torch.randn(*s, dtype=torch.bfloat16) * 0.05)(B, S, D)),
            "wqkv": _w((lambda *s: torch.randn(*s, dtype=torch.bfloat16) * 0.05)(D, 3 * D)),
            "wo": _w((lambda *s: torch.randn(*s, dtype=torch.bfloat16) * 0.05)(D, D)),
        }
    _A_in = _A_setup()

    def _B_setup():
        B, S, D, F = 1, 2048, 640, 1728
        return {
            "x": _w((lambda *s: torch.randn(*s, dtype=torch.bfloat16) * 0.05)(B, S, D)),
            "w_gate": _w((lambda *s: torch.randn(*s, dtype=torch.bfloat16) * 0.05)(D, F)),
            "w_up": _w((lambda *s: torch.randn(*s, dtype=torch.bfloat16) * 0.05)(D, F)),
            "w_down": _w((lambda *s: torch.randn(*s, dtype=torch.bfloat16) * 0.05)(F, D)),
        }
    _B_in = _B_setup()

    return {
        "A_x": _A_in["x"],
        "A_wqkv": _A_in["wqkv"],
        "A_wo": _A_in["wo"],
        "B_x": _B_in["x"],
        "B_w_gate": _B_in["w_gate"],
        "B_w_up": _B_in["w_up"],
        "B_w_down": _B_in["w_down"],
    }

def reference(A_x, A_wqkv, A_wo, B_x, B_w_gate, B_w_up, B_w_down):
    def _A_ref(x, wqkv, wo):
        B, S, D = x.shape
        H = 32; Dh = D // H
        qkv = (lambda x, *d: x.permute(*d))((x @ wqkv).reshape(B, S, 3, H, Dh), 2, 0, 3, 1, 4)
        q, k, v = qkv[0], qkv[1], qkv[2]
        phi = lambda t: torch.where(t > 0, t + 1, torch.exp(t)) + 1e-6
        pq, pk = phi(q), phi(k)
        kv = torch.einsum("bhsd,bhse->bhde", pk, v)
        z = torch.einsum("bhsd->bhd", pk)
        num = torch.einsum("bhqd,bhde->bhqe", pq, kv)
        den = torch.einsum("bhqd,bhd->bhq", pq, z)[..., None] + 1e-6
        o = num / den
        return (lambda x, *d: x.permute(*d))(o, 0, 2, 1, 3).reshape(B, S, D) @ wo

    def _B_ref(x, w_gate, w_up, w_down):
        g = _silu(x @ w_gate)
        u = x @ w_up
        return (g * u) @ w_down

    x = A_x
    xn = _layernorm(x, axis=-1)
    s = _A_ref(xn, A_wqkv, A_wo)
    g = _silu(_B_ref(xn, B_w_gate, B_w_up, B_w_down))
    return x + s * g
```

```python
def vr(a, n=1, f='v'):
    return f'{f}{a}' if n == 1 else f'{f}[{a}:{a+n-1}]'


def ar(a, n=1):
    return vr(a, n, 'a')


def sr(a, n=1):
    return vr(a, n, 's')


class Wait:
    def __init__(self, vm, lg):
        self.vm = vm
        self.lg = lg

    def text(self):
        p = []
        if self.vm is not None:
            p.append(f'vmcnt({min(self.vm, 63)})')
        if self.lg is not None:
            p.append(f'lgkmcnt({min(self.lg, 15)})')
        return '  s_waitcnt ' + ' '.join(p) if p else None


class E:
    def __init__(self):
        self.L = []
        self.vmq = []
        self.lgq = []
        self.uid = 0

    def __call__(self, s):
        for t in s.strip('\n').split('\n'):
            t = t.strip()
            if not t:
                continue
            self.L.append(t if t.endswith(':') else '  ' + t)

    def pad_m0(self):
        for t in reversed(self.L):
            if isinstance(t, Wait):
                continue
            if ' m0,' in t:
                self('s_nop 0')
            return

    def label(self, base):
        self.uid += 1
        return f'{base}_{self.uid}'

    def vm(self, s, tag):
        self(s)
        self.vmq.append(tag)

    def lds(self, s, tag):
        self(s)
        self.lgq.append(tag)

    @staticmethod
    def _need(q, tags):
        last = -1
        for i, t in enumerate(q):
            if t in tags:
                last = i
        if last < 0:
            return None
        return len(q) - 1 - last

    def wait(self, vm=None, lg=None):
        nv = nl = None
        if vm is not None:
            if vm == '*':
                nv = 0 if self.vmq else None
            else:
                nv = self._need(self.vmq, vm if isinstance(vm, (list, set)) else [vm])
            if nv is not None:
                nv = min(nv, 63)
                self.vmq = self.vmq[len(self.vmq) - nv:] if nv else []
        if lg is not None:
            if lg == '*':
                nl = 0 if self.lgq else None
            else:
                nl = self._need(self.lgq, lg if isinstance(lg, (list, set)) else [lg])
            if nl is not None:
                nl = min(nl, 15)
                self.lgq = self.lgq[len(self.lgq) - nl:] if nl else []
        self.L.append(Wait(nv, nl))
        return nv is not None or nl is not None

    def drain(self):
        self.L.append(Wait(0, 0))
        self.vmq = []
        self.lgq = []

    def loop(self, body, passes=3):
        outs = []
        saved = self.L
        uid0 = self.uid
        for _ in range(passes):
            self.L = []
            self.uid = uid0
            body()
            outs.append(self.L)
        n = len(outs[0])
        assert all(len(o) == n for o in outs), 'loop body differs between passes'
        merged = []
        for i in range(n):
            items = [o[i] for o in outs]
            if isinstance(items[0], Wait):
                vs = [w.vm for w in items if w.vm is not None]
                ls = [w.lg for w in items if w.lg is not None]
                merged.append(Wait(min(vs) if vs else None, min(ls) if ls else None))
            else:
                assert all(t == items[0] for t in items), (items[0], items[1])
                merged.append(items[0])
        self.L = saved + merged

    def text(self):
        out = []
        for t in self.L:
            if isinstance(t, Wait):
                s = t.text()
                if s:
                    out.append(s)
            else:
                out.append(t)
        return '\n'.join(out) + '\n'


def weave(e, mains, fillers, per=2):
    q = sorted(enumerate(fillers), key=lambda t: (t[1][0], t[0]))
    q = [t[1] for t in q]
    qi = 0
    debt = 0
    for i, m in enumerate(mains):
        used = m() or 0
        budget = per - debt
        debt = 0
        while qi < len(q) and q[qi][0] <= i and budget > 0:
            budget -= q[qi][1]
            q[qi][2]()
            qi += 1
        if budget < 0:
            debt = -budget
        debt += used
    while qi < len(q):
        q[qi][2]()
        qi += 1
```

```python
import sys
from emit import *

NAME = 'recurrent_scan__linear_attn_block__swiglu_ffn__prompt'

WS_FLAG = 0
WS_STAT = 0x20000
WS_CS = 0x28000
WS_KVP = 0x40000
WS_W2P = 0x100000
WS_H = 0x500000
WS_END = WS_H + 32 * 74 * 4096

L_X = 0
L_W = 65536
L_M = L_W + 3 * 24576
LDS_BYTES = 163840

S_W, S_RT, S_T, S_ROLE = 3, 4, 5, 6
SRD_X, SRD_WS, SRD_A, SRD_D = 8, 12, 16, 20
P_X, P_QKV, P_WO, P_GATE, P_UP, P_DOWN, P_OUT, P_DBG, P_WS = 24, 26, 28, 32, 34, 36, 38, 40, 42
S_XO = 44
S_XD, S_WD, S_WDELTA, S_WCNT = 48, 49, 50, 51
S_WSTR = 52
S_CNT = 54
S_PA, S_PB = 56, 58
S_STR = 60
S_CA, S_CB = 61, 62
S_T0 = 64
S_M = 80

LOG2E = 0x3fb8aa3b
NLOG2E = 0xbfb8aa3b
EPS6 = 0x358637bd
EPS5 = 0x3727c5ac


def srd(e, d, p, nbytes):
    e(f'''s_mov_b32 s{d}, s{p}
          s_mov_b32 s{d+1}, s{p+1}
          s_mov_b32 s{d+2}, {nbytes}
          s_mov_b32 s{d+3}, 0x00020000''')


def entry(e, name):
    e(f'''.globl {name}
.p2align 8
.type {name},@function''')
    e(f'{name}:')
    e(f'''s_cmp_ge_u32 s2, 256
          s_cbranch_scc1 {name}_end
          s_load_dwordx16 s[24:39], s[0:1], 0
          s_load_dwordx4 s[40:43], s[0:1], 64
          v_lshrrev_b32 v1, 6, v0
          v_and_b32 v0, 63, v0
          s_and_b32 s64, s2, 7
          v_readfirstlane_b32 s{S_W}, v1
          s_lshr_b32 s65, s2, 3
          s_and_b32 s66, s64, 1
          s_lshl_b32 s66, s66, 2
          s_and_b32 s67, s65, 3
          s_add_u32 s{S_RT}, s66, s67
          s_lshr_b32 s66, s64, 1
          s_lshr_b32 s67, s65, 2''')
    e(f'''s_lshl_b32 s68, s66, 2
          s_and_b32 s69, s66, 2
          s_add_u32 s68, s68, s69
          s_add_u32 s{S_T}, s68, s67
          s_mov_b32 s{S_ROLE}, 0
          s_lshl_b32 s68, s66, 1
          s_add_u32 s68, s68, s67
          s_sub_u32 s68, s68, 4
          s_cmp_ge_u32 s67, 4
          s_cselect_b32 s{S_T}, s68, s{S_T}
          s_cselect_b32 s{S_ROLE}, 1, s{S_ROLE}
          s_cmp_ge_u32 s67, 6
          s_cselect_b32 s{S_T}, s66, s{S_T}
          s_cselect_b32 s{S_ROLE}, 2, s{S_ROLE}''')
    e(f'''s_lshr_b32 s68, s66, 1
          s_xor_b32 s69, s66, s68
          s_xor_b32 s69, s69, s{S_RT}
          s_and_b32 s69, s69, 1
          s_lshl_b32 s70, s{S_RT}, 1
          s_add_u32 s70, s70, s68
          s_add_u32 s68, s68, 8
          s_cmp_eq_u32 s69, 0
          s_cselect_b32 s68, s70, s68
          s_cselect_b32 s69, 3, 0
          s_cmp_eq_u32 s67, 7
          s_cselect_b32 s{S_T}, s68, s{S_T}
          s_cselect_b32 s{S_ROLE}, s69, s{S_ROLE}
          s_waitcnt lgkmcnt(0)''')
    srd(e, SRD_X, P_X, 2621440)
    srd(e, SRD_WS, P_WS, WS_END)
    srd(e, SRD_A, P_OUT, 2621440)
    srd(e, SRD_D, P_DBG, 256)


def finish(e, name):
    e(f'{name}_end:')
    e('s_endpgm')


def stats_unit(e, base, srow):
    t = 240
    e(f'''v_mov_b32 v{t}, 0
          v_mov_b32 v{t+1}, 0
          v_mov_b32 v{t+2}, 0
          v_mov_b32 v{t+3}, 0''')
    for j in range(20):
        e.wait(vm=('S', base, j))
        for q in range(4):
            e(f'v_dot2_f32_bf16 v{t+q}, v{base+4*j+q}, v236, v{t+q}')
    e(f'''s_nop 2
          v_add_f32 v{t}, v{t}, v{t+1}
          v_add_f32 v{t+2}, v{t+2}, v{t+3}
          v_add_f32 v{t}, v{t}, v{t+2}
          s_nop 1
          v_add_f32_dpp v{t}, v{t}, v{t} quad_perm:[1,0,3,2] row_mask:0xf bank_mask:0xf
          s_nop 1
          v_add_f32_dpp v{t}, v{t}, v{t} quad_perm:[2,3,0,1] row_mask:0xf bank_mask:0xf
          v_mul_f32 v239, 0xbacccccd, v{t}''')
    e(f'''v_mov_b32 v{t}, 0
          v_mov_b32 v{t+1}, 0
          v_mov_b32 v{t+2}, 0
          v_mov_b32 v{t+3}, 0''')
    for j in range(20):
        d = 244
        for q in range(4):
            e(f'v_dot2_f32_bf16 v{d+2*q}, v{base+4*j+q}, v237, v239')
            e(f'v_dot2_f32_bf16 v{d+2*q+1}, v{base+4*j+q}, v238, v239')
        for q in range(8):
            e(f'v_fmac_f32 v{t+(q&3)}, v{d+q}, v{d+q}')
    e(f'''v_add_f32 v{t}, v{t}, v{t+1}
          v_add_f32 v{t+2}, v{t+2}, v{t+3}
          v_add_f32 v{t}, v{t}, v{t+2}
          s_nop 1
          v_add_f32_dpp v{t}, v{t}, v{t} quad_perm:[1,0,3,2] row_mask:0xf bank_mask:0xf
          s_nop 1
          v_add_f32_dpp v{t}, v{t}, v{t} quad_perm:[2,3,0,1] row_mask:0xf bank_mask:0xf
          v_mul_f32 v{t}, 0x3acccccd, v{t}
          v_sub_f32 v{t+1}, 0, v239
          v_cvt_pk_bf16_f32 v{t}, v{t}, v{t+1}
          v_and_b32 v244, 0xffff0000, v{t}
          v_lshlrev_b32 v{t}, 16, v{t}
          v_add_f32 v{t}, {hex(EPS5)}, v{t}
          v_cvt_pk_bf16_f32 v{t}, v{t}, v{t}
          v_lshlrev_b32 v{t}, 16, v{t}
          v_sqrt_f32 v{t}, v{t}
          s_nop 0
          v_cvt_pk_bf16_f32 v{t}, v{t}, v{t}
          v_lshlrev_b32 v{t}, 16, v{t}
          v_rcp_f32 v245, v{t}
          v_lshrrev_b32 v246, 2, v0
          v_lshlrev_b32 v246, 3, v246
          s_lshl_b32 s70, s{srow}, 3
          s_add_u32 s70, s70, {WS_STAT}
          s_mov_b32 exec_lo, 0x11111111
          s_mov_b32 exec_hi, 0x11111111''')
    e.vm(f'buffer_store_dwordx2 v[244:245], v246, s[{SRD_WS}:{SRD_WS+3}], s70 offen sc1', 'st')
    e('s_mov_b64 exec, -1')


def helper_role(e, cfg):
    hid = S_T
    e(f'''v_mov_b32 v236, 0x3f803f80
          v_mov_b32 v237, 0x00003f80
          v_mov_b32 v238, 0x3f800000
          v_lshrrev_b32 v1, 2, v0
          v_mul_u32_u24 v1, 1280, v1
          v_and_b32 v2, 3, v0
          v_lshl_add_u32 v1, v2, 4, v1
          s_lshl_b32 s64, s{hid}, 7
          s_lshl_b32 s65, s{S_W}, 5
          s_add_u32 s64, s64, s65
          s_add_u32 s65, s64, 16
          s_mul_i32 s66, s64, 1280
          s_mul_i32 s67, s65, 1280''')
    for u in range(2):
        base = 8 + 80 * u
        for j in range(20):
            e.vm(f'buffer_load_dwordx4 {vr(base+4*j,4)}, v1, s[{SRD_X}:{SRD_X+3}], s{66+u} offen offset:{64*j}', ('S', base, j))
    stats_unit(e, 8, 64)

    def c_setup():
        e(f'''s_add_u32 s75, s71, 10
              s_sub_u32 s76, s71, 20
              s_cmp_lt_u32 s71, 20
              s_cselect_b32 s75, s75, s76
              s_mov_b32 s76, 0
              s_sub_u32 s77, s71, 30
              s_lshr_b32 s78, s77, 1
              s_bitcmp1_b32 s77, 0
              s_cselect_b32 s{SRD_A}, s{P_UP}, s{P_GATE}
              s_cselect_b32 s{SRD_A+1}, s{P_UP+1}, s{P_GATE+1}
              s_mov_b32 s77, {1920*4}
              s_cselect_b32 s77, {3648*4}, s77
              s_cmp_lt_u32 s71, 30
              s_cselect_b32 s{SRD_A}, s{P_QKV}, s{SRD_A}
              s_cselect_b32 s{SRD_A+1}, s{P_QKV+1}, s{SRD_A+1}
              s_cselect_b32 s75, s75, s78
              s_cselect_b32 s76, s76, s77
              s_mov_b32 s77, 3456
              s_cselect_b32 s77, 3840, s77
              s_mul_i32 s{SRD_A+2}, s77, 640
              s_cmp_lt_u32 s71, 84
              s_cselect_b32 s{SRD_A+2}, s{SRD_A+2}, 0
              s_lshl_b32 s73, s77, 3
              s_lshl_b32 s74, s75, 8
              s_add_u32 s74, s74, s76
              s_mul_i32 s72, s{S_W}, 160
              s_mul_i32 s72, s72, s77
              s_lshl_b32 s75, s75, 7
              s_add_u32 s72, s72, s75
              v_lshrrev_b32 v2, 3, v0
              v_mul_lo_u32 v2, v2, s77
              v_and_b32 v3, 7, v0
              v_lshl_add_u32 v2, v3, 4, v2''')

    def c_load(j):
        e.vm(f'buffer_load_dwordx4 {vr(8+4*j,4)}, v2, s[{SRD_A}:{SRD_A+3}], s72 offen', ('C', j))
        e('s_add_u32 s72, s72, s73')

    e(f's_mov_b32 s71, s{hid}')
    c_setup()
    for j in range(20):
        c_load(j)
    stats_unit(e, 88, 65)
    if cfg.fused:
        cfg.publish(e, 'S')
    e(f'''s_lshl_b32 s64, s{S_W}, 9
          v_lshl_add_u32 v4, v0, 3, s64
          v_lshlrev_b32 v5, 3, v0
          v_and_b32 v6, 7, v0
          v_lshlrev_b32 v6, 5, v6
          v_lshrrev_b32 v7, 4, v0
          v_lshl_add_u32 v6, v7, 3, v6
          s_mov_b32 s69, 0''')
    lc = e.label('L_cs')
    e(f'{lc}:')

    def c_body():
        e('s_mov_b32 s68, s74\ns_mov_b32 s67, s71\ns_add_u32 s71, s71, 16')
        c_setup()
        for q in range(8):
            e(f'v_mov_b32 v{240+q}, 0')
        for j in range(20):
            e.wait(vm=('C', j))
            for q in range(4):
                e(f'v_dot2_f32_bf16 v{240+2*q}, v{8+4*j+q}, v237, v{240+2*q}')
                e(f'v_dot2_f32_bf16 v{241+2*q}, v{8+4*j+q}, v238, v{241+2*q}')
            c_load(j)
        e('s_nop 2')
        for q in range(4):
            e(f'v_permlane32_swap_b32 v{240+q}, v{244+q}')
        e('s_nop 1')
        for q in range(4):
            e(f'v_add_f32 v{240+q}, v{240+q}, v{244+q}')
        e('s_nop 1')
        for q in range(2):
            e(f'v_permlane16_swap_b32 v{240+q}, v{242+q}')
        e('s_nop 1')
        for q in range(2):
            e(f'v_add_f32 v{240+q}, v{240+q}, v{242+q}')
        e('s_nop 1')
        for q in range(2):
            e(f'v_add_f32_dpp v{240+q}, v{240+q}, v{240+q} row_ror:8 row_mask:0xf bank_mask:0xf')
        e('v_add_u32 v248, s69, v4\nv_add_u32 v249, s69, v5\ns_xor_b32 s69, s69, 2048')
        e.lds('ds_write_b64 v248, v[240:241]', 'cw')
        e.wait(lg='*')
        e('s_barrier')
        ls = e.label('L_csk')
        e(f's_cmp_lg_u32 s{S_W}, 0\ns_cbranch_scc1 {ls}')
        for q in range(4):
            e(f'ds_read_b64 {vr(240+2*q,2)}, v249 offset:{512*q}')
        e(f'''s_waitcnt lgkmcnt(0)
              v_add_f32 v240, v240, v242
              v_add_f32 v241, v241, v243
              v_add_f32 v244, v244, v246
              v_add_f32 v245, v245, v247
              v_add_f32 v240, v240, v244
              v_add_f32 v241, v241, v245
              s_add_u32 s68, s68, {WS_CS}
              s_mov_b32 exec_lo, 0x00ff00ff
              s_mov_b32 exec_hi, 0x00ff00ff
              buffer_store_dwordx2 v[240:241], v6, s[{SRD_WS}:{SRD_WS+3}], s68 offen sc1
              s_mov_b64 exec, -1''')
        if cfg.fused:
            cfg.publish(e, 'C')
        e(f'{ls}:')
        e(f's_cmp_lt_u32 s71, 84\ns_cbranch_scc1 {lc}')
    e.loop(c_body)
    e.drain()
    e('s_barrier')

    def r_issue():
        e(f'''s_sub_u32 s72, s71, 54
              s_mul_i32 s73, s72, 52
              s_lshr_b32 s73, s73, 8
              s_mul_i32 s74, s73, 5
              s_sub_u32 s74, s72, s74
              s_mul_i32 s73, s73, 160
              s_mul_i32 s75, s74, 40
              s_cmp_eq_u32 s74, 4
              s_cselect_b32 s75, 16, s75
              s_cselect_b32 s76, 80, 20
              s_cselect_b32 s77, 20, 1
              s_cselect_b32 s78, 1, 4
              s_add_u32 s73, s73, s75
              s_lshl_b32 s75, s71, 5
              s_cmp_lt_u32 s71, 54
              s_cselect_b32 s73, s75, s73
              s_cselect_b32 s76, 16, s76
              s_cselect_b32 s77, 1, s77
              s_cselect_b32 s78, 4, s78
              s_cselect_b32 s{SRD_A}, s{P_DOWN}, s{P_WO}
              s_cselect_b32 s{SRD_A+1}, s{P_DOWN+1}, s{P_WO+1}
              s_mov_b32 s75, {640*1280}
              s_cselect_b32 s{SRD_A+2}, {1728*1280}, s75
              s_cmp_lt_u32 s71, 74
              s_cselect_b32 s{SRD_A+2}, s{SRD_A+2}, 0
              s_mul_i32 s78, s78, s{S_W}
              s_add_u32 s73, s73, s78
              s_mul_i32 s73, s73, 1280
              v_mul_lo_u32 v2, v8, s76
              v_mul_lo_u32 v3, v9, s77
              v_add_u32 v2, v2, v3
              v_mad_u32_u24 v2, v2, v10, v11
              s_lshl_b32 s75, s{S_W}, 10
              s_add_u32 s75, s75, s69''')
        for ln in range(10):
            e(f's_add_u32 m0, s75, {ln*4096 - ln*128}\ns_nop 0')
            e.vm(f'buffer_load_dwordx4 v2, s[{SRD_A}:{SRD_A+3}], s73 offen offset:{ln*128} lds', 'Rn')

    e(f'''v_lshrrev_b32 v8, 5, v0
          v_bfe_u32 v9, v0, 3, 2
          v_mov_b32 v10, 1280
          v_lshrrev_b32 v11, 1, v9
          s_and_b32 s64, s{S_W}, 1
          s_lshl_b32 s64, s64, 1
          v_add_u32 v11, s64, v11
          v_lshlrev_b32 v11, 1, v11
          v_and_b32 v12, 7, v0
          v_xor_b32 v11, v11, v12
          v_lshlrev_b32 v11, 4, v11
          v_bfe_u32 v12, v0, 3, 2
          v_xor_b32 v12, s{S_W}, v12
          v_lshlrev_b32 v12, 5, v12
          v_and_b32 v13, 3, v0
          v_lshl_add_u32 v12, v13, 3, v12
          v_bfe_u32 v13, v0, 2, 2
          v_lshl_add_u32 v12, v13, 7, v12
          v_lshrrev_b32 v13, 4, v0
          v_lshl_add_u32 v12, v13, 10, v12
          v_lshlrev_b32 v13, 4, v0
          s_sub_u32 s71, 15, s{hid}
          s_mov_b32 s69, 0''')
    r_issue()
    lr = e.label('L_rp')
    e(f'{lr}:')

    def r_body():
        e.vmq = ['Rc' if t == 'Rn' else t for t in e.vmq]
        e(f'''s_mul_i32 s68, s71, 40960
              s_lshl_b32 s67, s{S_W}, 10
              s_add_u32 s68, s68, s67
              s_add_u32 s68, s68, {WS_W2P}
              v_add_u32 v14, s69, v12
              s_mov_b32 s66, s71
              s_add_u32 s71, s71, 16
              s_xor_b32 s69, s69, 65536''')
        r_issue()
        e.wait(vm='Rc')
        e('s_barrier')
        for ln in range(10):
            for hh in range(2):
                e.lds(f'ds_read_b64_tr_b16 {vr(16+4*ln+2*hh,2)}, v14 offset:{ln*4096+hh*512}', ('r', ln))
            if ln >= 3:
                r_store(ln - 3)
        for ln in range(7, 10):
            r_store(ln)
        e('s_barrier')
        if cfg.fused:
            cfg.publish(e, 'R')
        e(f's_cmp_lt_u32 s71, 74\ns_cbranch_scc1 {lr}')

    def r_store(ln):
        e.wait(lg=('r', ln))
        e.vm(f'buffer_store_dwordx4 {vr(16+4*ln,4)}, v13, s[{SRD_WS}:{SRD_WS+3}], s68 offen sc1', 'Rs')
        e('s_add_u32 s68, s68, 4096')
    e.loop(r_body)
    e.drain()
    srd(e, SRD_A, P_OUT, 2621440)


V_ACC = 64
V_XD = 2
V_WD = 4
V_XR = 8
V_WR = 10
A_X = 0
A_W = 64


def p1_setup(e):
    t = S_T
    e(f'''s_mul_i32 s64, s{t}, 192
          s_mul_i32 s65, s{t}, 160
          s_and_b32 s65, s65, 0xffffffc0
          s_add_u32 s65, s65, 1280
          s_mul_i32 s66, s{t}, 320
          s_cmp_eq_u32 s{S_ROLE}, 1
          s_cselect_b32 s65, s65, s66
          s_mov_b32 s66, 128
          s_cselect_b32 s66, 1280, s66
          s_add_u32 s66, s66, s65
          s_lshl_b32 s{S_CA}, s65, 1
          s_lshl_b32 s{S_CB}, s66, 1
          s_lshl_b32 s67, s64, 1
          s_add_u32 s68, s67, {1920*4}
          s_add_u32 s67, s67, {3648*4}
          s_cmp_eq_u32 s{S_ROLE}, 0
          s_cselect_b32 s{S_CA}, s68, s{S_CA}
          s_cselect_b32 s{S_CB}, s67, s{S_CB}
          s_cselect_b32 s65, s64, s65
          s_cselect_b32 s66, s64, s66
          s_cselect_b64 s[{S_PA}:{S_PA+1}], s[{P_GATE}:{P_GATE+1}], s[{P_QKV}:{P_QKV+1}]
          s_cselect_b64 s[{S_PB}:{S_PB+1}], s[{P_UP}:{P_UP+1}], s[{P_QKV}:{P_QKV+1}]
          s_mov_b32 s{S_STR}, 3840
          s_cselect_b32 s{S_STR}, 3456, s{S_STR}
          s_add_u32 s{S_PA}, s{S_PA}, s65
          s_addc_u32 s{S_PA+1}, s{S_PA+1}, 0
          s_add_u32 s{S_PB}, s{S_PB}, s66
          s_addc_u32 s{S_PB+1}, s{S_PB+1}, 0
          s_lshl_b32 s{S_WSTR}, s{S_STR}, 6
          s_mov_b32 s{S_WSTR+1}, 0''')
    e(f'''v_mov_b32 v20, s{S_PA}
          v_mov_b32 v21, s{S_PA+1}
          v_mov_b32 v22, s{S_PB}
          v_mov_b32 v23, s{S_PB+1}
          v_cmp_lt_u32 vcc, 31, v0
          v_bfe_u32 v24, v0, 2, 3
          s_lshl_b32 s64, s{S_W}, 4
          v_cndmask_b32 v20, v20, v22, vcc
          v_cndmask_b32 v21, v21, v23, vcc
          v_add_u32 v24, s64, v24
          v_mul_lo_u32 v24, v24, s{S_STR}
          v_and_b32 v25, 3, v0
          v_lshl_add_u32 v26, v25, 4, v24
          v_mov_b32 v27, 0
          v_lshl_add_u64 {vr(V_WD,2)}, v[26:27], 0, v[20:21]
          v_xor_b32 v25, 2, v25
          v_lshl_add_u32 v26, v25, 4, v24
          s_lshl_b32 s64, s{S_STR}, 3
          v_add_u32 v26, s64, v26
          v_lshl_add_u64 {vr(V_WD+2,2)}, v[26:27], 0, v[20:21]''')
    e(f'''v_lshrrev_b32 v20, 3, v0
          v_mul_u32_u24 v20, 1280, v20
          v_and_b32 v21, 7, v0
          v_lshrrev_b32 v22, 4, v0
          v_xor_b32 v21, v21, v22
          v_lshl_add_u32 v{V_XD}, v21, 4, v20
          v_xor_b32 v21, 4, v21
          v_lshl_add_u32 v{V_XD+1}, v21, 4, v20
          v_add_u32 v{V_XD+1}, {8*1280}, v{V_XD+1}
          s_lshl_b32 s64, s{S_RT}, 2
          s_add_u32 s64, s64, s{S_W}
          s_mul_i32 s{S_XO}, s64, {64*1280}
          s_add_u32 s{S_XO+1}, s{S_XO}, {16*1280}
          s_add_u32 s{S_XO+2}, s{S_XO}, {32*1280}
          s_add_u32 s{S_XO+3}, s{S_XO}, {48*1280}
          s_lshl_b32 s{S_XD}, s{S_W}, 13
          s_lshl_b32 s{S_WD}, s{S_W}, 11
          s_add_u32 s{S_WD}, s{S_WD}, {L_W}''')
    for st in range(2):
        for f in dma_list(e, st, 'D0' if st == 0 else 'D1'):
            f()
    e(f'''v_and_b32 v20, 15, v0
          v_lshrrev_b32 v21, 1, v20
          v_lshrrev_b32 v22, 4, v0
          v_xor_b32 v21, v21, v22
          v_lshlrev_b32 v20, 7, v20
          v_add_u32 v20, s{S_XD}, v20
          v_lshl_add_u32 v{V_XR}, v21, 4, v20
          v_xor_b32 v21, 4, v21
          v_lshl_add_u32 v{V_XR+1}, v21, 4, v20
          s_mov_b32 s{S_WCNT}, 0''')


def dma_list(e, xbuf, tag):
    fs = []
    for i in range(2):
        for sg in range(3):
            fs.append(lambda i=i, sg=sg: e(f's_add_u32 m0, s{S_WD}, {sg*8192 + i*1024 - sg*64}'))
            fs.append(lambda i=i, sg=sg: (e.pad_m0(),
                                          e.vm(f'global_load_lds_dwordx4 {vr(V_WD+2*i,2)}, off offset:{64*sg}', tag + 'w')))
        fs.append(lambda i=i: e(f'v_lshl_add_u64 {vr(V_WD+2*i,2)}, {vr(V_WD+2*i,2)}, 0, s[{S_WSTR}:{S_WSTR+1}]'))
    fs.append(lambda: e(f's_add_u32 s{S_WD}, s{S_WD}, 24576'))
    fs.append(lambda: e(f's_sub_u32 s79, s{S_WD}, {3*24576}'))
    fs.append(lambda: e(f's_cmp_ge_u32 s{S_WD}, {L_M}\ns_cselect_b32 s{S_WD}, s79, s{S_WD}'))
    for i in range(8):
        fs.append(lambda i=i: e(f's_add_u32 m0, s{S_XD}, {xbuf*32768 + i*1024}'))
        fs.append(lambda i=i: (e.pad_m0(),
                               e.vm(f'buffer_load_dwordx4 v{V_XD+(i&1)}, s[{SRD_X}:{SRD_X+3}], s{S_XO+(i>>1)} offen lds', tag + 'x')))
    fs.append(lambda: e(f'v_add_u32 v{V_XD}, 128, v{V_XD}'))
    fs.append(lambda: e(f'v_add_u32 v{V_XD+1}, 128, v{V_XD+1}'))
    return fs


class Role:
    def __init__(self, kind):
        self.kind = kind
        if kind == 'ffn':
            self.blocks = [(V_WR + (a & 1), (a >> 1) * 8192 + mt * 512) for a in range(6) for mt in range(2)]
            self.nwr = 2
        elif kind == 'kv':
            self.blocks = [(V_WR + a, mt * 512) for mt in range(2) for a in range(5)]
            self.nwr = 5
        else:
            self.blocks = [(V_WR + a, 0) for a in range(10)]
            self.nwr = 10
        self.nb = len(self.blocks)
        self.swapped = kind != 'kv'

    def acc(self, b, rb):
        return V_ACC + (b * 4 + rb) * 4


def wr_addr(e, dst, byte):
    e(f'''v_lshrrev_b32 v24, 6, v{byte}
          v_and_b32 v25, 63, v{byte}
          v_xor_b32 v25, v25, v21
          v_lshl_add_u32 v24, v24, 13, v20
          v_add_u32 v{dst}, v24, v25''')


def p1_role_setup(e, R):
    e(f'''v_lshrrev_b32 v21, 4, v0
          v_bfe_u32 v22, v0, 2, 2
          v_lshlrev_b32 v20, 10, v21
          v_lshl_add_u32 v20, v22, 6, v20
          v_add_u32 v20, {L_W}, v20
          v_and_b32 v21, 1, v21
          v_lshlrev_b32 v21, 5, v21
          v_and_b32 v22, 3, v0''')
    if R.kind == 'ffn':
        for hb in range(2):
            e(f'v_lshlrev_b32 v23, 3, v22\nv_add_u32 v23, {32*hb}, v23')
            wr_addr(e, V_WR + hb, 23)
    else:
        for g in range(2 if R.kind == 'q' else 1):
            if R.kind == 'kv':
                e(f's_and_b32 s64, s{S_T}, 1\ns_lshl_b32 s64, s64, 5')
            else:
                e(f's_mov_b32 s64, {32*g}')
            for i in range(5):
                if i < 4:
                    e(f'v_lshl_add_u32 v23, v22, 3, s64\nv_add_u32 v23, {40*i}, v23')
                else:
                    e(f'v_mul_u32_u24 v23, 40, v22\nv_add_u32 v23, s64, v23\nv_add_u32 v23, 32, v23')
                wr_addr(e, V_WR + 5 * g + i, 23)
                if g:
                    e(f'v_add_u32 v{V_WR+5*g+i}, 512, v{V_WR+5*g+i}')
    for r in range(V_ACC, V_ACC + R.nb * 16):
        e(f'v_mov_b32 v{r}, 0')


def xread(e, xb, rb, ks):
    e.lds(f'ds_read_b128 {ar(A_X + xb*32 + rb*8 + ks*4, 4)}, v{V_XR+ks} offset:{xb*32768 + rb*2048}', ('x', xb))


def wread(e, R, b, slot, ks, hh):
    reg, imm = R.blocks[b]
    e.lds(f'ds_read_b64_tr_b16 {ar(A_W + slot*8 + ks*4 + hh*2, 2)}, v{reg} offset:{imm + ks*4096 + hh*256}', ('w', slot, ks))


def p1_stage(e, R, par, slot0, dma, nxt, extra=()):
    nb = R.nb
    mains = []
    fill = []
    e.vmq = [{'D1w': 'D0w', 'D1x': 'D0x'}.get(t, t) for t in e.vmq]
    for b in range(nb):
        slot = (slot0 + b) % 4
        for rb in range(4):
            for kk in range(2):
                ks = kk ^ (rb & 1)

                def m(b=b, rb=rb, ks=ks, slot=slot):
                    used = 0
                    if rb == 0:
                        tags = [('w', slot, ks)]
                        if b == 0:
                            tags.append(('x', par))
                        e.wait(lg=tags)
                        used = 1
                    a = ar(A_W + slot*8 + ks*4, 4)
                    x = ar(A_X + par*32 + rb*8 + ks*4, 4)
                    acc = vr(R.acc(b, rb), 4)
                    if R.swapped:
                        e(f'v_mfma_f32_16x16x32_bf16 {acc}, {a}, {x}, {acc}')
                    else:
                        e(f'v_mfma_f32_16x16x32_bf16 {acc}, {x}, {a}, {acc}')
                    return used
                mains.append(m)
        b2 = b + 2
        if b2 < nb:
            for ks in range(2):
                for hh in range(2):
                    fill.append((8*b + ks*2 + hh, 1, lambda b2=b2, ks=ks, hh=hh: wread(e, R, b2, (slot0 + b2) % 4, ks, hh)))
        elif nxt:
            if b2 == nb:
                def sync():
                    e.wait(vm='D0w', lg='*')
                    e('s_barrier')
                fill.append((8*b, 2, sync))
                fill.append((8*b - 6, 2, lambda: e(f'''s_add_u32 s{S_WCNT}, s{S_WCNT}, 1
                                                        s_cmp_eq_u32 s{S_WCNT}, 3
                                                        s_cselect_b32 s{S_WCNT}, 0, s{S_WCNT}
                                                        s_cselect_b32 s{S_WDELTA}, {(-49152) & 0xffffffff}, s78''')))
                for r in range(R.nwr):
                    fill.append((8*b - 3, 1, lambda r=r: e(f'v_add_u32 v{V_WR+r}, s{S_WDELTA}, v{V_WR+r}')))
            for ks in range(2):
                for hh in range(2):
                    fill.append((8*b + 1 + ks*2 + hh, 1, lambda b2=b2, ks=ks, hh=hh: wread(e, R, b2 - nb, (slot0 + b2) % 4, ks, hh)))
    if dma:
        dl = dma_list(e, par, 'D1')
        span = 8 * (nb - 4)
        for i, f in enumerate(dl):
            fill.append((1 + i * span // len(dl), 1, f))
    if nxt:
        p0 = 8 * (nb - 6) + 4
        fill.append((p0, 1, lambda: e.wait(vm='D0x')))
        k = 0
        for rb in range(4):
            for ks in range(2):
                fill.append((p0 + 1 + 2 * k + (4 if k >= 2 else 0), 1, lambda rb=rb, ks=ks: xread(e, par ^ 1, rb, ks)))
                k += 1
    fill += list(extra)
    weave(e, mains, fill)


def p1_main(e, R):
    e('s_mov_b32 s78, 24576')
    e.wait(vm=['D0w', 'D0x'])
    e('s_barrier')
    for rb in range(4):
        for ks in range(2):
            xread(e, 0, rb, ks)
    for b in range(2):
        for ks in range(2):
            for hh in range(2):
                wread(e, R, b, b, ks, hh)
    nb = R.nb
    niter, per = 4, 2
    if niter > 1:
        ll = e.label('L_p1')
        e(f's_mov_b32 s{S_CNT}, {niter}')
        e(f'{ll}:')

        def body():
            for s in range(per):
                p1_stage(e, R, s & 1, (s * nb) % 4, True, True)
            e(f's_sub_u32 s{S_CNT}, s{S_CNT}, 1\ns_cmp_lg_u32 s{S_CNT}, 0\ns_cbranch_scc1 {ll}')
        e.loop(body)
    else:
        for s in range(8):
            p1_stage(e, R, s & 1, (s * nb) % 4, True, True)
    p1_stage(e, R, 0, (8 * nb) % 4, False, True)
    p1_stage(e, R, 1, (9 * nb) % 4, False, False)


def load_stats_cs(e):
    e(f'''v_lshlrev_b32 v20, 4, v0
          v_add_u32 v21, s{S_CA}, v20
          s_sub_u32 s64, s{S_CB}, {24*16}
          v_add_u32 v22, s64, v20
          v_cmp_lt_u32 vcc, 23, v0
          s_lshl_b32 s64, s{S_W}, 11
          s_add_u32 s64, s64, {L_M}
          v_cndmask_b32 v21, v21, v22, vcc
          s_mov_b32 m0, s64
          s_mov_b32 s65, {WS_CS}''')
    e.vm(f'buffer_load_dwordx4 v21, s[{SRD_WS}:{SRD_WS+3}], s65 offen sc1 lds', 'sc')
    e(f'''s_add_u32 m0, s64, 1024
          s_lshl_b32 s65, s{S_RT}, 2
          s_add_u32 s65, s65, s{S_W}
          s_lshl_b32 s65, s65, 9
          s_add_u32 s65, s65, {WS_STAT}''')
    e.vm(f'buffer_load_dwordx4 v20, s[{SRD_WS}:{SRD_WS+3}], s65 offen sc1 lds', 'sc')
    e('v_mov_b32 v1, s64')
    e.wait(vm='sc')


def h_base(e, dst, step_expr_sgpr):
    e(f'''s_lshl_b32 s{dst}, s{S_RT}, 2
          s_add_u32 s{dst}, s{dst}, s{S_W}
          s_mul_i32 s{dst}, s{dst}, 74
          s_add_u32 s{dst}, s{dst}, s{step_expr_sgpr}
          s_lshl_b32 s{dst}, s{dst}, 12
          s_add_u32 s{dst}, s{dst}, {WS_H}''')


def ffn_epilogue(e, R, cfg):
    load_stats_cs(e)
    e('''v_and_b32 v20, 15, v0
         v_lshl_add_u32 v20, v20, 3, v1
         v_lshrrev_b32 v21, 4, v0
         v_lshl_add_u32 v21, v21, 4, v1
         v_lshlrev_b32 v22, 4, v0''')
    for rb in range(4):
        e.lds(f'ds_read_b64 {vr(2+2*rb,2)}, v20 offset:{1024+128*rb}', 'st')
    e.wait(lg='st')
    for rb in range(4):
        e(f'''v_mul_f32 v{10+rb}, {hex(NLOG2E)}, v{3+2*rb}
              v_mul_f32 v{14+rb}, v{3+2*rb}, v{3+2*rb}
              v_rcp_f32 v{14+rb}, v{14+rb}
              v_sub_f32 v{2+2*rb}, 0, v{2+2*rb}''')
    e(f's_mul_i32 s65, s{S_T}, 3')
    h_base(e, 64, 65)

    def csread(a):
        d = 24 + 8 * (a & 1)
        e.lds(f'ds_read_b128 {vr(d,4)}, v21 offset:{64*a}', ('cs', a))
        e.lds(f'ds_read_b128 {vr(d+4,4)}, v21 offset:{384+64*a}', ('cs', a))
    csread(0)
    for a in range(6):
        if a < 5:
            csread(a + 1)
        e.wait(lg=('cs', a))
        d = 24 + 8 * (a & 1)
        for rb in range(4):
            g = R.acc(2*a, rb)
            u = R.acc(2*a + 1, rb)
            t = 40 + 4 * (rb & 1)
            for r in range(4):
                e(f'v_fmac_f32 v{g+r}, v{2+2*rb}, v{d+r}')
            for r in range(4):
                e(f'v_mul_f32 v{t+r}, v{10+rb}, v{g+r}')
            for r in range(4):
                e(f'v_exp_f32 v{t+r}, v{t+r}')
            for r in range(4):
                e(f'v_fmac_f32 v{u+r}, v{2+2*rb}, v{d+4+r}')
            for r in range(4):
                e(f'v_fma_f32 v{t+r}, v{t+r}, v{14+rb}, v{14+rb}')
            for r in range(4):
                e(f'v_rcp_f32 v{t+r}, v{t+r}')
            for r in range(4):
                e(f'v_mul_f32 v{g+r}, v{g+r}, v{u+r}')
            for r in range(4):
                e(f'v_mul_f32 v{g+r}, v{g+r}, v{t+r}')
            o = R.acc(2*(a & ~1) + 1, rb) + 2 * (a & 1)
            e(f'v_cvt_pk_bf16_f32 v{o}, v{g}, v{g+1}\nv_cvt_pk_bf16_f32 v{o+1}, v{g+2}, v{g+3}')
            if a & 1:
                e.vm(f'buffer_store_dwordx4 {vr(o-2,4)}, v22, s[{SRD_WS}:{SRD_WS+3}], s64 offen offset:{1024*rb} sc1', 'hs')
        if a & 1:
            e('s_add_u32 s64, s64, 4096')
    if cfg.fused:
        cfg.publish(e, 'H')


def phi4(e, a, rstd, c1, t, veps):
    for r in range(4):
        e(f'v_mul_f32 v{t+r}, v{c1(r)}, v{a+r}')
    for r in range(4):
        e(f'v_exp_f32 v{t+r}, v{t+r} clamp')
    for r in range(4):
        e(f'v_fma_f32 v{a+r}, v{a+r}, v{rstd(r)}, v{veps}')
    for r in range(4):
        e(f'v_max_f32 v{a+r}, v{a+r}, v{veps}')
    for r in range(4):
        e(f'v_add_f32 v{a+r}, v{a+r}, v{t+r}')


def col_index(e, dst, g, i, kind, lane_n):
    pass


def kv_epilogue(e, R, cfg):
    load_stats_cs(e)
    e(f'''v_and_b32 v20, 15, v0
          s_and_b32 s64, s{S_T}, 1
          s_lshl_b32 s64, s64, 6
          v_add_u32 v21, s64, v1
          v_lshl_add_u32 v22, v20, 2, v21
          v_lshrrev_b32 v23, 2, v20
          v_mul_u32_u24 v23, 80, v23
          v_and_b32 v24, 3, v20
          v_lshl_add_u32 v23, v24, 2, v23
          v_add_u32 v23, v23, v21
          v_lshrrev_b32 v24, 4, v0
          v_lshl_add_u32 v24, v24, 5, v1
          v_mov_b32 v12, {hex(EPS6)}''')
    for mt in range(2):
        for i in range(4):
            e.lds(f'ds_read_b32 v{2+5*mt+i}, v22 offset:{384*mt+80*i}', 'cs')
        e.lds(f'ds_read_b32 v{2+5*mt+4}, v23 offset:{384*mt+64}', 'cs')
    for i in range(4):
        m = 0xffff << (16 * i)
        e(f's_mov_b32 s{S_M+2*i}, {hex(m & 0xffffffff)}\ns_mov_b32 s{S_M+2*i+1}, {hex(m >> 32)}')
        m = (0xf << (4 * i)) * 0x10001
        e(f's_mov_b32 s{S_M+8+2*i}, {hex(m)}\ns_mov_b32 s{S_M+8+2*i+1}, {hex(m)}')
    for r in range(4):
        e(f'v_mov_b32 v{44+r}, 0x3f803f80')
    T = 0
    for rb in range(4):
        e.lds(f'ds_read_b128 v[28:31], v24 offset:{1024+128*rb}', 'st')
        e.lds(f'ds_read_b128 v[32:35], v24 offset:{1024+128*rb+16}', 'st')
        e.wait(lg='*')
        for r in range(4):
            e(f'v_mul_f32 v{36+r}, {hex(LOG2E)}, v{29+2*r}\nv_sub_f32 v{28+2*r}, 0, v{28+2*r}')
        for b in range(10):
            a = R.acc(b, rb)
            for r in range(4):
                e(f'v_fmac_f32 v{a+r}, v{28+2*r}, v{2+b}')
            if b < 5:
                phi4(e, a, lambda r: 29 + 2*r, lambda r: 36 + r, 40, 12)
            else:
                for r in range(4):
                    e(f'v_mul_f32 v{a+r}, v{29+2*r}, v{a+r}')
            o = R.acc(b, rb & ~1) + 2 * (rb & 1)
            e(f'v_cvt_pk_bf16_f32 v{o}, v{a}, v{a+1}\nv_cvt_pk_bf16_f32 v{o+1}, v{a+2}, v{a+3}')
        if rb & 1:
            e('s_nop 1')
            op = lambda b: vr(R.acc(b, rb - 1), 4)
            c = (lambda k: '0') if rb == 1 else (lambda k: ar(T + 4*k, 4))
            pairs = []
            for i in range(4):
                pairs.append((op(i), op(5 + i)))
            for i in range(4):
                pairs.append((op(4), op(5 + i)))
            for i in range(4):
                pairs.append((op(i), op(9)))
            for i in range(4):
                pairs.append((op(i), 'v[44:47]'))
            pairs.append((op(4), op(9)))
            pairs.append((op(4), 'v[44:47]'))
            for k, (A_, B_) in enumerate(pairs):
                e(f'v_mfma_f32_16x16x32_bf16 {ar(T+4*k,4)}, {A_}, {B_}, {c(k)}')
    e('s_nop 7')
    for k in range(16, 72):
        e(f'v_accvgpr_read_b32 v{64+k}, a{k}')
    e('s_nop 1')
    for grp, mb in ((1, S_M), (2, S_M + 8), (3, S_M + 8)):
        for i in range(1, 4):
            for r in range(4):
                e(f'v_cndmask_b32 v{64+16*grp+r}, v{64+16*grp+r}, v{64+16*grp+4*i+r}, s[{mb+2*i}:{mb+2*i+1}]')
    e('s_mov_b32 s64, 0x00f0000f\ns_mov_b32 s65, 0xf0000f00')
    for r in range(4):
        e(f'v_cndmask_b32 v{128+r}, v{132+r}, v{128+r}, s[64:65]')
    e(f'''s_barrier
          s_lshl_b32 s64, s{S_W}, 10
          v_lshl_add_u32 v20, v0, 4, s64
          s_lshl_b32 s64, s{S_W}, 13
          v_lshl_add_u32 v21, v0, 4, s64
          v_lshlrev_b32 v22, 4, v0''')
    for k in range(4):
        e.lds(f'ds_write_b128 v20, {ar(4*k,4)} offset:{4096*k}', 'tw')
    for k in range(4):
        e.lds(f'ds_write_b128 v20, {vr(80+16*k,4)} offset:{4096*(4+k)}', 'tw')
    e.wait(lg='*')
    e('s_barrier')
    for k in range(8):
        e.lds(f'ds_read_b128 {vr(64+4*k,4)}, v21 offset:{1024*k}', ('tr', k >> 2))
    e(f'''s_lshl_b32 s64, s{S_T}, 3
          s_add_u32 s64, s64, s{S_RT}
          s_lshl_b32 s64, s64, 2
          s_add_u32 s64, s64, s{S_W}
          s_lshl_b32 s64, s64, 11
          s_add_u32 s64, s64, {WS_KVP}''')
    for k in range(2):
        e.wait(lg=('tr', k))
        b = 64 + 16 * k
        for r in range(4):
            e(f'v_add_f32 v{b+r}, v{b+r}, v{b+4+r}\nv_add_f32 v{b+8+r}, v{b+8+r}, v{b+12+r}')
        for r in range(4):
            e(f'v_add_f32 v{b+r}, v{b+r}, v{b+8+r}')
        e.vm(f'buffer_store_dwordx4 {vr(b,4)}, v22, s[{SRD_WS}:{SRD_WS+3}], s64 offen offset:{1024*k} sc1', 'ks')
    if cfg.fused:
        cfg.publish(e, 'KV')


def q_epilogue(e, R, cfg):
    load_stats_cs(e)
    e(f'''v_and_b32 v20, 15, v0
          v_lshl_add_u32 v20, v20, 3, v1
          v_lshrrev_b32 v22, 4, v0
          v_lshl_add_u32 v21, v22, 4, v1
          v_mul_u32_u24 v22, 80, v22
          v_add_u32 v22, v22, v1
          v_mov_b32 v18, {hex(EPS6)}''')
    for rb in range(4):
        e.lds(f'ds_read_b64 {vr(2+2*rb,2)}, v20 offset:{1024+128*rb}', 'st')
    e.wait(lg='st')
    for rb in range(4):
        e(f'v_mul_f32 v{10+rb}, {hex(LOG2E)}, v{3+2*rb}\nv_sub_f32 v{2+2*rb}, 0, v{2+2*rb}')
    for g in range(2):
        for i in (0, 1, 2, 3, 4):
            b = 5 * g + i
            off = (384 + 64) * g
            if i < 4:
                e.lds(f'ds_read_b128 v[24:27], v21 offset:{off+80*i}', 'cs')
            else:
                e.lds(f'ds_read_b128 v[24:27], v22 offset:{off+64}', 'cs')
            e.wait(lg='cs')
            for rb in range(4):
                a = R.acc(b, rb)
                for r in range(4):
                    e(f'v_fmac_f32 v{a+r}, v{2+2*rb}, v{24+r}')
                phi4(e, a, lambda r: 3 + 2*rb, lambda r: 10 + rb, 28, 18)
                if i < 4:
                    e(f'v_cvt_pk_bf16_f32 v{a}, v{a}, v{a+1}\nv_cvt_pk_bf16_f32 v{a+1}, v{a+2}, v{a+3}')
                else:
                    for ii in range(4):
                        o = R.acc(5*g + ii, rb) + 2
                        e(f'v_cvt_pk_bf16_f32 v{o}, v{a}, v{a+1}\nv_cvt_pk_bf16_f32 v{o+1}, v{a+2}, v{a+3}')
    e(f'''s_barrier
          v_lshlrev_b32 v2, 3, v0
          v_lshrrev_b32 v20, 4, v0
          v_and_b32 v21, 15, v0
          v_lshrrev_b32 v22, 2, v21
          v_and_b32 v23, 3, v21
          v_lshlrev_b32 v24, 7, v20
          v_lshl_add_u32 v25, v22, 3, v24
          v_add_u32 v26, {5*512}, v25
          v_add_u32 v27, {6*512}, v24
          v_cmp_eq_u32 vcc, 0, v23
          v_mov_b32 v28, 8192
          v_mov_b32 v30, 0
          v_cndmask_b32 v7, v27, v26, vcc
          v_mov_b32 v31, 0
          v_add_u32 v29, {4*512}, v2''')
    e.lds('ds_write_b64 v28, v[30:31]', 'z')
    e.lds('ds_write_b64 v28, v[30:31] offset:4096', 'z')
    for i in range(4):
        e(f'''v_add_u32 v26, {7*512 + 32*i}, v25
              v_add_u32 v27, {7*512 + 32*((i+1)&3)}, v24
              v_cmp_eq_u32 s[64:65], {i}, v20
              v_cndmask_b32 v26, v27, v26, vcc
              s_nop 0
              v_cndmask_b32 v{3+i}, v28, v29, s[64:65]
              v_cndmask_b32 v{8+i}, v28, v26, s[64:65]''')
    if cfg.fused:
        cfg.await_(e, 'KV')
    e(f'''v_lshlrev_b32 v12, 4, v0
          s_lshr_b32 s65, s{S_W}, 1
          s_lshl_b32 s64, s{S_T}, 1
          s_add_u32 s64, s64, s65
          s_lshl_b32 s64, s64, 16
          s_and_b32 s65, s{S_W}, 1
          s_lshl_b32 s65, s65, 12
          s_add_u32 s64, s64, s65
          s_add_u32 s64, s64, {WS_KVP}''')
    ring = [32, 48, 224, 240]
    SUM = R.acc(4, 0)

    def pload(rt):
        d = SUM if rt == 0 else ring[(rt - 1) % 4]
        for k in range(4):
            e.vm(f'buffer_load_dwordx4 {vr(d+4*k,4)}, v12, s[{SRD_WS}:{SRD_WS+3}], s64 offen offset:{1024*k} sc1', ('p', rt))
        e('s_add_u32 s64, s64, 8192')
    for rt in range(5):
        pload(rt)
    for rt in range(1, 8):
        e.wait(vm=('p', rt))
        d = ring[(rt - 1) % 4]
        for r in range(16):
            e(f'v_add_f32 v{SUM+r}, v{SUM+r}, v{d+r}')
        if rt + 4 < 8:
            pload(rt + 4)
    e(f's_lshl_b32 s64, s{S_W}, 11\nv_add_u32 v13, s64, v2')
    for k in range(4):
        e(f'v_cvt_pk_bf16_f32 v{SUM+4*k}, v{SUM+4*k}, v{SUM+4*k+1}\nv_cvt_pk_bf16_f32 v{SUM+4*k+1}, v{SUM+4*k+2}, v{SUM+4*k+3}')
        e.lds(f'ds_write_b64 v13, {vr(SUM+4*k,2)} offset:{512*k}', 'tw')
    e.wait(lg='*')
    e('s_barrier')
    e(f's_mul_i32 s65, s{S_T}, 5\ns_add_u32 s65, s65, 54')
    h_base(e, 64, 65)
    YO = R.acc(9, 0)
    YT = R.acc(4, 0)

    def aread(h):
        g, i = h >> 2, h & 3
        d = 16 + 8 * (h & 1)
        e.lds(f'ds_read_b64 {vr(d,2)}, v2 offset:{4096*g+512*i}', ('a', h))
        e.lds(f'ds_read_b64 {vr(d+2,2)}, v{3+i} offset:{4096*g}', ('a', h))
        e.lds(f'ds_read_b64 {vr(d+4,2)}, v7 offset:{4096*g+32*i}', ('a', h))
        e.lds(f'ds_read_b64 {vr(d+6,2)}, v{8+i} offset:{4096*g}', ('a', h))
    aread(0)
    for h in range(8):
        g, i = h >> 2, h & 3
        if h < 7:
            aread(h + 1)
        e.wait(lg=('a', h))
        d = 16 + 8 * (h & 1)
        D = 32 if (h & 1) == 0 else 224
        for rb in range(4):
            B_ = vr(R.acc(5*g + i, rb), 4)
            e(f'v_mfma_f32_16x16x32_bf16 {vr(D+8*rb+4,4)}, {vr(d+4,4)}, {B_}, 0')
            e(f'v_mfma_f32_16x16x32_bf16 {vr(D+8*rb,4)}, {vr(d,4)}, {B_}, 0')
        e('s_nop 0')
        for rb in range(4):
            e(f'v_add_f32 v{D+8*rb+5}, {hex(EPS6)}, v{D+8*rb+5}')
            if rb == 0:
                e('s_nop 1')
            elif rb < 3:
                e('s_nop 0')
        for rb in range(4):
            e(f'v_rcp_f32 v{D+8*rb+5}, v{D+8*rb+5}')
        for rb in range(4):
            n = D + 8 * rb
            for r in range(4):
                e(f'v_mul_f32 v{n+r}, v{n+r}, v{n+5}')
            o = R.acc(5*g + (i & ~1), rb) + 2 * (h & 1)
            e(f'v_cvt_pk_bf16_f32 v{o}, v{n}, v{n+1}\nv_cvt_pk_bf16_f32 v{o+1}, v{n+2}, v{n+3}')
            if h & 1:
                e(f'v_mul_f32 v{n+4}, v{n+4}, v{n+5}')
                e.vm(f'buffer_store_dwordx4 {vr(o-2,4)}, v12, s[{SRD_WS}:{SRD_WS+3}], s64 offen offset:{1024*rb} sc1', 'os')
                e(f'v_cvt_pk_bf16_f32 v{YO+4*rb+(h>>1)}, v{YT+rb}, v{n+4}')
            else:
                e(f'v_mul_f32 v{YT+rb}, v{n+4}, v{n+5}')
        if h & 1:
            e('s_add_u32 s64, s64, 4096')
    for rb in range(4):
        e.vm(f'buffer_store_dwordx4 {vr(YO+4*rb,4)}, v12, s[{SRD_WS}:{SRD_WS+3}], s64 offen offset:{1024*rb} sc1', 'os')
    if cfg.fused:
        cfg.publish(e, 'O')


def p2_role(e, cfg):
    S_R, S_CT, S_HO, S_WO = 44, 45, 46, 47
    NST = 7
    e(f'''s_and_b32 s64, s2, 7
          s_lshr_b32 s65, s2, 3
          s_lshl_b32 s64, s64, 2
          s_and_b32 s66, s65, 3
          s_add_u32 s{S_R}, s64, s66
          s_lshr_b32 s{S_CT}, s65, 2
          s_mul_i32 s{S_HO}, s{S_R}, 74
          s_add_u32 s{S_HO}, s{S_HO}, s{S_W}
          s_lshl_b32 s{S_HO}, s{S_HO}, 12
          s_add_u32 s{S_HO}, s{S_HO}, {WS_H}
          s_mul_i32 s{S_WO}, s{S_W}, 40960
          s_mul_i32 s64, s{S_CT}, 5120
          s_add_u32 s{S_WO}, s{S_WO}, s64
          s_add_u32 s{S_WO}, s{S_WO}, {WS_W2P}
          v_lshlrev_b32 v6, 4, v0
          v_add_u32 v7, 4096, v6''')
    for jj in range(4):
        e(f's_xor_b32 s64, s{S_W}, {jj}\ns_lshl_b32 s64, s64, 10\nv_add_u32 v{2+jj}, s64, v6')
    srd(e, 96, P_WS, WS_END)
    e(f'''s_cmp_lt_u32 s{S_W}, 2
          s_cselect_b32 s98, s98, 0''')

    def loads(i):
        d = 36 * (i % NST)
        fs = []
        ho, wo = S_HO, S_WO
        sd = 96 if i == 13 else SRD_WS
        for b in range(5):
            fs.append(lambda b=b, wo=wo: e.vm(f'buffer_load_dwordx4 {ar(d+16+4*b,4)}, v{6 if b < 4 else 7}, s[{sd}:{sd+3}], s{wo} offen offset:{1024*(b&3)} sc1', ('l', i)))
        for jj in range(4):
            fs.append(lambda jj=jj, ho=ho: e.vm(f'buffer_load_dwordx4 {ar(d+4*jj,4)}, v{2+jj}, s[{sd}:{sd+3}], s{ho} offen sc1', ('l', i)))
        st = 2 if i == 13 else 4
        fs.append(lambda: e(f's_add_u32 s{S_HO}, s{S_HO}, {st*4096}\ns_add_u32 s{S_WO}, s{S_WO}, {st*40960}'))
        return fs
    for i in range(NST - 1):
        for f in loads(i):
            f()
    for k in range(3):
        e(f'''v_add_u32 v20, {64*k}, v0
              v_mul_u32_u24 v21, 205, v20
              v_lshrrev_b32 v21, 11, v21
              v_mul_u32_u24 v22, 10, v21
              v_sub_u32 v22, v20, v22
              v_mul_u32_u24 v23, 1280, v21
              v_lshl_add_u32 v{8+k}, v22, 4, v23
              v_mul_u32_u24 v23, 336, v21
              v_lshl_add_u32 v{11+k}, v22, 5, v23''')
    e(f'''v_cmp_gt_u32 vcc, 32, v0
          v_mov_b32 v20, 0x40000000
          s_lshl_b32 s64, s{S_R}, 2
          v_cndmask_b32 v10, v20, v10, vcc
          s_add_u32 s64, s64, s{S_W}
          s_mul_i32 s70, s64, {16*1280}
          s_mul_i32 s64, s{S_CT}, 160
          s_add_u32 s70, s70, s64''')
    ACC = [96, 176]
    for i in range(19):
        d = 36 * (i % NST)
        part = 0 if i < 14 else 1
        mains = []
        for jj in range(4):
            for bb in range(5):
                b = bb if (jj & 1) == 0 else 4 - bb

                def m(jj=jj, b=b, first=(jj == 0 and bb == 0)):
                    if first:
                        e.wait(vm=('l', i))
                    acc = vr(ACC[part] + (jj*5 + b) * 4, 4)
                    c = '0' if i in (0, 14) else acc
                    e(f'v_mfma_f32_16x16x32_bf16 {acc}, {ar(d+16+4*b,4)}, {ar(d+4*jj,4)}, {c}')
                    return 1 if first else 0
                mains.append(m)
        fill = []
        if i + NST - 1 < 19:
            fill = [(1 + k, 1, f) for k, f in enumerate(loads(i + NST - 1))]
        if i == 13:
            for k in range(3):
                fill.append((2 + k, 1, lambda k=k: e.vm(f'buffer_load_dwordx4 {vr(24+4*k,4)}, v{8+k}, s[{SRD_X}:{SRD_X+3}], s70 offen', 'xr')))
        weave(e, mains, fill)
    e('s_nop 7')
    for jj in range(1, 4):
        e(f's_xor_b32 s64, s{S_W}, {jj}\ns_mul_i32 s64, s64, 15360\ns_add_u32 s64, s64, {(jj-1)*5120}\nv_add_u32 v{2+jj}, s64, v6\nv_add_u32 v{14+jj}, 61440, v{2+jj}')
    for part in range(2):
        for jj in range(1, 4):
            for b in range(5):
                e.lds(f'ds_write_b128 v{(2 if part == 0 else 14)+jj}, {vr(ACC[part]+(jj*5+b)*4,4)} offset:{1024*b}', 'rw')
    e(f's_mul_i32 s64, s{S_W}, 15360\nv_add_u32 v2, s64, v6\nv_add_u32 v14, 61440, v2')
    e.wait(lg='*')
    e('s_barrier')
    for part in range(2):
        for k in range(15):
            e.lds(f'ds_read_b128 {vr(ACC[part]+20+4*k,4)}, v{2 if part == 0 else 14} offset:{1024*k}', ('rr', part, k // 5))
        for jj in range(3):
            e.wait(lg=('rr', part, jj))
            for r in range(20):
                e(f'v_add_f32 v{ACC[part]+r}, v{ACC[part]+r}, v{ACC[part]+20+20*jj+r}')
    F, Sx = ACC
    e(f'''s_mul_i32 s64, s{S_W}, 5376
          s_add_u32 s64, s64, 122880
          v_and_b32 v20, 15, v0
          v_mul_u32_u24 v20, 336, v20
          v_lshrrev_b32 v21, 4, v0
          v_lshl_add_u32 v20, v21, 4, v20
          v_add_u32 v20, s64, v20''')
    for b in range(5):
        t = 40 + 4 * b
        for r in range(4):
            e(f'v_mul_f32 v{t+r}, {hex(NLOG2E)}, v{F+4*b+r}')
        for r in range(4):
            e(f'v_exp_f32 v{t+r}, v{t+r}')
        for r in range(4):
            e(f'v_mul_f32 v{F+4*b+r}, v{F+4*b+r}, v{Sx+4*b+r}')
        for r in range(4):
            e(f'v_add_f32 v{t+r}, 1.0, v{t+r}')
        for r in range(4):
            e(f'v_rcp_f32 v{t+r}, v{t+r}')
        e('s_nop 0')
        for r in range(4):
            e(f'v_mul_f32 v{t+r}, v{F+4*b+r}, v{t+r}')
        e.lds(f'ds_write_b128 v20, {vr(t,4)} offset:{64*b}', 'ow')
    for k in range(3):
        e(f'v_add_u32 v{11+k}, s64, v{11+k}')
    e.wait(lg='*')
    for k in range(3):
        e.lds(f'ds_read_b128 {vr(64+8*k,4)}, v{11+k}', ('or', k))
        e.lds(f'ds_read_b128 {vr(68+8*k,4)}, v{11+k} offset:16', ('or', k))
    e.wait(vm='xr')
    for k in range(3):
        e.wait(lg=('or', k))
        for q in range(4):
            x = 24 + 4 * k + q
            y = 64 + 8 * k + 2 * q
            e(f'''v_lshlrev_b32 v22, 16, v{x}
                  v_and_b32 v23, 0xffff0000, v{x}
                  v_add_f32 v22, v22, v{y}
                  v_add_f32 v23, v23, v{y+1}
                  v_cvt_pk_bf16_f32 v{x}, v22, v23''')
        e.vm(f'buffer_store_dwordx4 {vr(24+4*k,4)}, v{8+k}, s[{SRD_A}:{SRD_A+3}], s70 offen', 'out')


class Cfg:
    fused = False


def descriptor(name):
    return f'''.p2align 6
.amdhsa_kernel {name}
  .amdhsa_next_free_vgpr 512
  .amdhsa_next_free_sgpr 102
  .amdhsa_accum_offset 256
  .amdhsa_group_segment_fixed_size 0
  .amdhsa_kernarg_size 80
  .amdhsa_user_sgpr_count 2
  .amdhsa_user_sgpr_kernarg_segment_ptr 1
  .amdhsa_system_sgpr_workgroup_id_x 1
.end_amdhsa_kernel
'''


def gemm_role(e, kind, cfg):
    R = Role(kind)
    p1_role_setup(e, R)
    p1_main(e, R)
    e('s_nop 7')
    {'ffn': ffn_epilogue, 'kv': kv_epilogue, 'q': q_epilogue}[kind](e, R, cfg)


def build_multi():
    cfg = Cfg()
    names = ['aux_kernel', 'p1_kernel', 'q_kernel', 'p2_kernel']
    e = E()
    entry(e, names[0])
    e(f's_cmp_lg_u32 s{S_ROLE}, 3\ns_cbranch_scc1 {names[0]}_end')
    helper_role(e, cfg)
    finish(e, names[0])

    e.vmq, e.lgq = [], []
    entry(e, names[1])
    e(f's_cmp_ge_u32 s{S_ROLE}, 2\ns_cbranch_scc1 {names[1]}_end')
    p1_setup(e)
    st = list(e.vmq)
    e(f's_cmp_eq_u32 s{S_ROLE}, 1\ns_cbranch_scc1 L_kv')
    gemm_role(e, 'ffn', cfg)
    e('s_endpgm')
    e('L_kv:')
    e.vmq, e.lgq = list(st), []
    gemm_role(e, 'kv', cfg)
    finish(e, names[1])

    e.vmq, e.lgq = [], []
    entry(e, names[2])
    e(f's_cmp_lg_u32 s{S_ROLE}, 2\ns_cbranch_scc1 {names[2]}_end')
    p1_setup(e)
    gemm_role(e, 'q', cfg)
    finish(e, names[2])

    e.vmq, e.lgq = [], []
    entry(e, names[3])
    p2_role(e, cfg)
    finish(e, names[3])

    head = ''.join(f'; @launch kernel={n} grid=(256,1,1) block=(256,1,1) lds={LDS_BYTES}\n' for n in names)
    head += '.amdgcn_target "amdgcn-amd-amdhsa--gfx950"\n.text\n'
    return head + e.text() + '.section .rodata,"a"\n' + ''.join(descriptor(n) for n in names)


if __name__ == '__main__':
    out = sys.argv[1]
    open(out, 'w').write(build_multi())
```

```python
import sys
base = open('multi.s').read().split('\n')
DESC = '''.p2align 6
.amdhsa_kernel %s
  .amdhsa_next_free_vgpr 32
  .amdhsa_next_free_sgpr 64
  .amdhsa_accum_offset 32
  .amdhsa_group_segment_fixed_size 0
  .amdhsa_kernarg_size 80
  .amdhsa_user_sgpr_count 2
  .amdhsa_user_sgpr_kernarg_segment_ptr 1
  .amdhsa_system_sgpr_workgroup_id_x 1
.end_amdhsa_kernel
'''
SLOT = 0x8000000
def pro(n):
    return f'''.globl {n}
.p2align 8
.type {n},@function
{n}:
  s_memrealtime s[20:21]
  s_cmp_ge_u32 s2, 1
  s_cbranch_scc1 {n}_end
  s_load_dwordx16 s[24:39], s[0:1], 0
  s_load_dwordx4 s[40:43], s[0:1], 64
  s_waitcnt lgkmcnt(0)
  s_mov_b32 s12, s42
  s_mov_b32 s13, s43
  s_mov_b32 s14, 0x10000000
  s_mov_b32 s15, 0x00020000
  v_mov_b32 v1, {SLOT}
'''
def probe(ptr, size, off, stride, n, skip, flags=''):
    return pro('probe_kernel') + f'''  s_mov_b32 s8, s{ptr}
  s_mov_b32 s9, s{ptr+1}
  s_mov_b32 s10, {size}
  s_mov_b32 s11, 0x00020000
  v_mov_b32 v2, {off}
  s_mov_b32 s16, 0
  s_memrealtime s[22:23]
  s_waitcnt lgkmcnt(0)
  s_cmp_eq_u32 s16, {skip + n}
  s_cbranch_scc1 L_pe
L_pl:
  s_cmp_lg_u32 s16, {skip}
  s_cbranch_scc1 L_pn
  s_memrealtime s[22:23]
  s_waitcnt lgkmcnt(0)
L_pn:
  buffer_load_dword v3, v2, s[8:11], 0 offen {flags}
  s_waitcnt vmcnt(0)
  v_add_u32 v2, {stride}, v2
  s_add_u32 s16, s16, 1
  s_cmp_lt_u32 s16, {skip + n}
  s_cbranch_scc1 L_pl
L_pe:
  s_memrealtime s[18:19]
  s_waitcnt lgkmcnt(0)
  s_sub_u32 s18, s18, s22
  v_mov_b32 v4, s20
  v_mov_b32 v5, s18
  buffer_store_dwordx2 v[4:5], v1, s[12:15], 0 offen
  s_waitcnt vmcnt(0)
probe_kernel_end:
  s_endpgm
'''
def final(scale):
    return pro('final_kernel') + f'''  buffer_load_dwordx2 v[4:5], v1, s[12:15], 0 offen
  s_waitcnt vmcnt(0)
  v_readfirstlane_b32 s16, v4
  v_readfirstlane_b32 s17, v5
  s_nop 3
  s_min_u32 s17, s17, 20000
  s_mul_i32 s17, s17, {scale}
  s_add_u32 s17, s17, 30000
L_fs:
  s_memrealtime s[18:19]
  s_waitcnt lgkmcnt(0)
  s_sub_u32 s18, s18, s16
  s_cmp_lt_u32 s18, s17
  s_cbranch_scc1 L_fs
final_kernel_end:
  s_endpgm
'''
def mk(out, pk, scale):
    L = ['; @launch kernel=probe_kernel grid=(1,1,1) block=(64,1,1) lds=0'] + base[:4] + ['; @launch kernel=final_kernel grid=(1,1,1) block=(64,1,1) lds=0'] + base[4:]
    t = '\n'.join(L).replace('.section .rodata,"a"', pk + final(scale) + '.section .rodata,"a"') + DESC % 'probe_kernel' + DESC % 'final_kernel'
    open(out, 'w').write(t)
mk('pr0.s', probe(30, 2621440, 0, 8192, 0, 0), 0)
mk('pr1.s', probe(30, 2621440, 0, 8192, 100, 4), 1)
mk('pr2.s', probe(30, 2621440, 0, 8192, 1, 0), 10)
mk('pr3.s', probe(42, 0x10000000, 0x4000000, 8192, 100, 4), 1)
mk('pr4.s', probe(42, 0x10000000, 0x1000000, 2097152, 100, 1), 1)
mk('pr5.s', probe(32, 2211840, 0, 8192, 100, 4), 1)
```

```python
import sys
base = open('multi.s').read().split('\n')
DESC = '''.p2align 6
.amdhsa_kernel %s
  .amdhsa_next_free_vgpr 32
  .amdhsa_next_free_sgpr 64
  .amdhsa_accum_offset 32
  .amdhsa_group_segment_fixed_size 0
  .amdhsa_kernarg_size 80
  .amdhsa_user_sgpr_count 2
  .amdhsa_user_sgpr_kernarg_segment_ptr 1
  .amdhsa_system_sgpr_workgroup_id_x 1
.end_amdhsa_kernel
'''
SLOT = 0x8000000
def pro(n):
    return f'''.globl {n}
.p2align 8
.type {n},@function
{n}:
  s_memrealtime s[20:21]
  s_cmp_ge_u32 s2, 1
  s_cbranch_scc1 {n}_end
  s_load_dwordx16 s[24:39], s[0:1], 0
  s_load_dwordx4 s[40:43], s[0:1], 64
  s_waitcnt lgkmcnt(0)
  s_mov_b32 s12, s42
  s_mov_b32 s13, s43
  s_mov_b32 s14, 0x10000000
  s_mov_b32 s15, 0x00020000
  v_mov_b32 v1, {SLOT}
'''
def probe(ptr, size, off, stride, n, skip, flags=''):
    return pro('probe_kernel') + f'''  s_mov_b32 s8, s{ptr}
  s_mov_b32 s9, s{ptr+1}
  s_mov_b32 s10, {size}
  s_mov_b32 s11, 0x00020000
  v_mov_b32 v2, {off}
  s_mov_b32 s16, 0
  s_memrealtime s[22:23]
  s_waitcnt lgkmcnt(0)
  s_cmp_eq_u32 s16, {skip + n}
  s_cbranch_scc1 L_pe
L_pl:
  s_cmp_lg_u32 s16, {skip}
  s_cbranch_scc1 L_pn
  s_memrealtime s[22:23]
  s_waitcnt lgkmcnt(0)
L_pn:
  buffer_load_dword v3, v2, s[8:11], 0 offen {flags}
  s_waitcnt vmcnt(0)
  v_add_u32 v2, {stride}, v2
  s_add_u32 s16, s16, 1
  s_cmp_lt_u32 s16, {skip + n}
  s_cbranch_scc1 L_pl
L_pe:
  s_memrealtime s[18:19]
  s_waitcnt lgkmcnt(0)
  s_sub_u32 s18, s18, s22
  v_mov_b32 v4, s20
  v_mov_b32 v5, s18
  buffer_store_dwordx2 v[4:5], v1, s[12:15], 0 offen
  s_waitcnt vmcnt(0)
probe_kernel_end:
  s_endpgm
'''
def final(scale):
    return pro('final_kernel') + f'''  buffer_load_dwordx2 v[4:5], v1, s[12:15], 0 offen
  s_waitcnt vmcnt(0)
  v_readfirstlane_b32 s16, v4
  v_readfirstlane_b32 s17, v5
  s_nop 3
  s_min_u32 s17, s17, 20000
  s_mul_i32 s17, s17, {scale}
  s_add_u32 s17, s17, 30000
L_fs:
  s_memrealtime s[18:19]
  s_waitcnt lgkmcnt(0)
  s_sub_u32 s18, s18, s16
  s_cmp_lt_u32 s18, s17
  s_cbranch_scc1 L_fs
final_kernel_end:
  s_endpgm
'''
def mk(out, pk, scale):
    L = ['; @launch kernel=probe_kernel grid=(1,1,1) block=(64,1,1) lds=0'] + base[:4] + ['; @launch kernel=final_kernel grid=(1,1,1) block=(64,1,1) lds=0'] + base[4:]
    t = '\n'.join(L).replace('.section .rodata,"a"', pk + final(scale) + '.section .rodata,"a"') + DESC % 'probe_kernel' + DESC % 'final_kernel'
    open(out, 'w').write(t)
mk('pr0.s', probe(30, 2621440, 0, 8192, 0, 0), 0)
mk('pr1.s', probe(30, 2621440, 0, 8192, 100, 4), 1)
mk('pr2.s', probe(30, 2621440, 0, 8192, 1, 0), 10)
mk('pr3.s', probe(42, 0x10000000, 0x4000000, 8192, 100, 4), 1)
mk('pr4.s', probe(42, 0x10000000, 0x1000000, 2097152, 100, 1), 1)
mk('pr5.s', probe(32, 2211840, 0, 8192, 100, 4), 1)

def bwprobe(kb, flags, store=False):
    n = kb // 4
    body = ''
    for i in range(n):
        r = 8 + 4 * (i % 4)
        if store:
            body += f'  buffer_store_dwordx4 v[8:11], v2, s[12:15], s16 offen {flags}\n  s_add_u32 s16, s16, 4096\n'
        else:
            body += f'  s_add_u32 m0, s17, {(i % 8) * 1024}\n  s_waitcnt vmcnt(7)\n  buffer_load_dwordx4 v2, s[12:15], s16 offen {flags} lds\n  s_add_u32 s16, s16, 4096\n'
    return pro('probe_kernel').replace('s_cmp_ge_u32 s2, 1', 's_cmp_ge_u32 s2, 256') + f'''  v_lshlrev_b32 v2, 4, v0
  v_lshrrev_b32 v3, 6, v0
  v_mov_b32 v8, 0
  v_mov_b32 v9, 0
  v_mov_b32 v10, 0
  v_mov_b32 v11, 0
  v_readfirstlane_b32 s17, v3
  s_nop 3
  s_lshl_b32 s17, s17, 13
  s_mul_i32 s16, s2, {kb * 1024}
  s_add_u32 s16, s16, 0x4000000
  s_memrealtime s[22:23]
  s_waitcnt lgkmcnt(0)
{body}
  s_waitcnt vmcnt(0)
  s_barrier
  s_memrealtime s[18:19]
  s_waitcnt lgkmcnt(0)
  s_cmp_lg_u32 s2, 0
  s_cbranch_scc1 probe_kernel_end
  s_sub_u32 s18, s18, s22
  v_mov_b32 v4, s20
  v_mov_b32 v5, s18
  buffer_store_dwordx2 v[4:5], v1, s[12:15], 0 offen
  s_waitcnt vmcnt(0)
probe_kernel_end:
  s_endpgm
'''
def mk2(out, pk, scale, spin=30000, big=False):
    mk(out, pk, scale)
    t = open(out).read().replace('s_add_u32 s17, s17, 30000', f's_add_u32 s17, s17, {spin}')
    if big:
        t = t.replace('kernel=probe_kernel grid=(1,1,1) block=(64,1,1) lds=0', 'kernel=probe_kernel grid=(256,1,1) block=(256,1,1) lds=65536')
    open(out, 'w').write(t)
mk2('pr0.s', probe(30, 2621440, 0, 8192, 0, 0), 0, 12000)
mk2('pr1.s', probe(30, 2621440, 0, 8192, 0, 0), 0, 60000)
mk2('pr2.s', bwprobe(96, ''), 10, big=True)
mk2('pr3.s', bwprobe(96, 'nt'), 10, big=True)
mk2('pr4.s', bwprobe(32, ''), 10, big=True)
mk2('pr5.s', bwprobe(40, 'sc1', store=True), 10, big=True)
```

```python
def vr(a, n=1, f='v'):
    return f'{f}{a}' if n == 1 else f'{f}[{a}:{a+n-1}]'


def ar(a, n=1):
    return vr(a, n, 'a')


def sr(a, n=1):
    return vr(a, n, 's')


class Wait:
    def __init__(self, vm, lg):
        self.vm = vm
        self.lg = lg

    def text(self):
        p = []
        if self.vm is not None:
            p.append(f'vmcnt({min(self.vm, 63)})')
        if self.lg is not None:
            p.append(f'lgkmcnt({min(self.lg, 15)})')
        return '  s_waitcnt ' + ' '.join(p) if p else None


class E:
    def __init__(self):
        self.L = []
        self.vmq = []
        self.lgq = []
        self.uid = 0

    def __call__(self, s):
        for t in s.strip('\n').split('\n'):
            t = t.strip()
            if not t:
                continue
            self.L.append(t if t.endswith(':') else '  ' + t)

    def pad_m0(self):
        for t in reversed(self.L):
            if isinstance(t, Wait):
                continue
            if ' m0,' in t:
                self('s_nop 0')
            return

    def label(self, base):
        self.uid += 1
        return f'{base}_{self.uid}'

    def vm(self, s, tag):
        self(s)
        self.vmq.append(tag)

    def lds(self, s, tag):
        self(s)
        self.lgq.append(tag)

    @staticmethod
    def _need(q, tags):
        last = -1
        for i, t in enumerate(q):
            if t in tags:
                last = i
        if last < 0:
            return None
        return len(q) - 1 - last

    def wait(self, vm=None, lg=None):
        nv = nl = None
        if vm is not None:
            if vm == '*':
                nv = 0 if self.vmq else None
            else:
                nv = self._need(self.vmq, vm if isinstance(vm, (list, set)) else [vm])
            if nv is not None:
                nv = min(nv, 63)
                self.vmq = self.vmq[len(self.vmq) - nv:] if nv else []
        if lg is not None:
            if lg == '*':
                nl = 0 if self.lgq else None
            else:
                nl = self._need(self.lgq, lg if isinstance(lg, (list, set)) else [lg])
            if nl is not None:
                nl = min(nl, 15)
                self.lgq = self.lgq[len(self.lgq) - nl:] if nl else []
        self.L.append(Wait(nv, nl))
        return nv is not None or nl is not None

    def drain(self):
        self.L.append(Wait(0, 0))
        self.vmq = []
        self.lgq = []

    def loop(self, body, passes=3):
        outs = []
        saved = self.L
        uid0 = self.uid
        for _ in range(passes):
            self.L = []
            self.uid = uid0
            body()
            outs.append(self.L)
        n = len(outs[0])
        assert all(len(o) == n for o in outs), 'loop body differs between passes'
        merged = []
        for i in range(n):
            items = [o[i] for o in outs]
            if isinstance(items[0], Wait):
                vs = [w.vm for w in items if w.vm is not None]
                ls = [w.lg for w in items if w.lg is not None]
                merged.append(Wait(min(vs) if vs else None, min(ls) if ls else None))
            else:
                assert all(t == items[0] for t in items), (items[0], items[1])
                merged.append(items[0])
        self.L = saved + merged

    def text(self):
        out = []
        for t in self.L:
            if isinstance(t, Wait):
                s = t.text()
                if s:
                    out.append(s)
            else:
                out.append(t)
        return '\n'.join(out) + '\n'


def weave(e, mains, fillers, per=2):
    q = sorted(enumerate(fillers), key=lambda t: (t[1][0], t[0]))
    q = [t[1] for t in q]
    qi = 0
    debt = 0
    for i, m in enumerate(mains):
        used = m() or 0
        budget = per - debt
        debt = 0
        while qi < len(q) and q[qi][0] <= i and budget > 0:
            budget -= q[qi][1]
            q[qi][2]()
            qi += 1
        if budget < 0:
            debt = -budget
        debt += used
    while qi < len(q):
        q[qi][2]()
        qi += 1


class Weaver:
    COST = {'s': 1, 'd': 1, 'm': 2, 'v': 1, 't': 2}

    def __init__(self, e):
        self.e = e
        self.mains = []
        self.streams = {}
        self.head = {}
        self.forced = 0
        self.last = {}
        self.now = -1

    def main(self, f):
        self.mains.append(f)
        return len(self.mains) - 1

    def add(self, stream, kind, pos, f, due=None, n=1, gap=0):
        self.streams.setdefault(stream, []).append((kind, pos, due, f, n, gap))
        self.head.setdefault(stream, 0)

    def _emit(self, name):
        it = self.streams[name][self.head[name]]
        self.head[name] += 1
        self.last[name] = self.now
        it[3]()
        return it

    def _peek(self, name, i):
        q = self.streams[name]
        h = self.head[name]
        if h < len(q) and q[h][1] <= i:
            if i >= 0 and i < self.last.get(name, -99) + q[h][5]:
                assert q[h][2] is None or q[h][2] > i, ('gap constraint misses its due date', name, i)
                return None
            return q[h]
        return None

    def run(self):
        for name, q in self.streams.items():
            due = None
            for k in range(len(q) - 1, -1, -1):
                kind, pos, d, f, n, gap = q[k]
                if d is not None and (due is None or d < due):
                    due = d
                if due is not None:
                    assert pos <= due or pos < 0, ('position after due date', name, k, pos, due)
                    q[k] = (kind, pos, due, f, n, gap)
                    due -= gap
        for i in range(-1, len(self.mains)):
            self.now = i
            if i >= 0:
                self.mains[i]()
            left = 2
            first = True
            valu = False
            progress = True
            while progress:
                progress = False
                cands = [(name, it) for name in self.streams for it in [self._peek(name, i)] if it]
                if i < 0:
                    cands = [c for c in cands if c[1][1] < 0]
                order = 'sdmtv' if first else 'dmtvs'
                cands.sort(key=lambda c: (order.index(c[1][0]) if first and c[1][0] == 's' else 1,
                                          0 if (c[1][2] is not None and c[1][2] <= i) else 1,
                                          0 if c[1][0] in 'dm' else 1))
                for name, it in cands:
                    kind, n = it[0], it[4]
                    cost = self.COST[kind] * n
                    if kind == 's' and first:
                        cost -= 1
                    urgent = i < 0 or (it[2] is not None and it[2] <= i)
                    fits = cost <= left and not (valu and kind in 'dm')
                    if kind == 's' and first and cost > 2:
                        fits = True
                    if fits or urgent:
                        if not fits and i >= 0:
                            self.forced += 1
                        self._emit(name)
                        left -= cost
                        first = False
                        valu = valu or kind in 'vt'
                        progress = True
                        break
        self.left_over = {name: len(q) - self.head[name] for name, q in self.streams.items() if self.head[name] < len(q)}
        for name, q in self.streams.items():
            while self.head[name] < len(q):
                if q[self.head[name]][5]:
                    self.e(f's_nop {min(q[self.head[name]][5], 8) - 1}')
                self._emit(name)
```

```python
import sys
from emit import *

NAME = 'recurrent_scan__linear_attn_block__swiglu_ffn__prompt'
KN = NAME + '_kernel'

WS_FLAG = 0
WS_STAT = 0x10000
WS_CSP = 0x18000
WS_KVP = 0x80000
WS_W2P = 0x100000
WS_H = 0x500000
WS_END = WS_H + 32 * 74 * 4096

L_X = 0
L_W = 65536
L_M = L_W + 3 * 24576
LDS_BYTES = 163840

S_W, S_RT, S_T, S_ROLE, S_LID = 3, 4, 5, 6, 7
SRD_X, SRD_WS, SRD_A, SRD_D = 8, 12, 16, 20
P_X, P_QKV, P_WO, P_GATE, P_UP, P_DOWN, P_OUT, P_DBG, P_WS = 24, 26, 28, 32, 34, 36, 38, 40, 42
S_XO = 44
S_XD, S_WD, S_PHI, S_DX = 48, 49, 50, 51
S_WFW, S_WBK, S_DW = 52, 54, 56
S_STR, S_SPIN, S_TWO = 58, 59, 60
S_R, S_CT, S_HO, S_WO = 80, 81, 82, 83
S_M = 84
SRD_Z = 96

LOG2E = 0x3fb8aa3b
NLOG2E = 0xbfb8aa3b
EPS6 = 0x358637bd
EPS5 = 0x3727c5ac
OOB = 0x40000000
WS = f's[{SRD_WS}:{SRD_WS+3}]'

V_FLAG = 1
V_XD = 2
V_WD = 4
V_XR = 8
V_WR = 10
V_ST = 20
V_CS = 28
V_CA = 36
V_PA, V_PD = 38, 39
V_T = 40
V_ONE = 52
V_CR = 56
V_L16 = 59
V_ACC = 64
A_X = 0
A_W = 64
A_C = 96

OPT = dict(pre_ffn=6, pre_kv=11, pre_q=9, rate=5.5)
STAMPS = False
WS_STAMP = 0x8000000


def stamp(e, idx):
    if not STAMPS:
        return
    e(f'''s_memrealtime s[100:101]
          s_waitcnt lgkmcnt(0)
          v_writelane_b32 v{e.sreg}, s100, {2*idx}
          s_memtime s[100:101]
          s_waitcnt lgkmcnt(0)
          v_writelane_b32 v{e.sreg}, s100, {2*idx+1}''')
    e.lgq = []


def stamp_reg(e, r):
    if STAMPS and r != e.sreg:
        e(f'v_mov_b32 v{r}, v{e.sreg}')
    e.sreg = r


def stamp_out(e):
    if not STAMPS:
        return
    e(f'''s_mov_b32 s96, s{P_WS}
          s_mov_b32 s97, s{P_WS+1}
          s_mov_b32 s98, 0x10000000
          s_mov_b32 s99, 0x00020000
          s_lshl_b32 s95, s2, 2
          s_add_u32 s95, s95, s{S_W}
          s_lshl_b32 s95, s95, 8
          s_add_u32 s95, s95, {WS_STAMP}
          v_lshlrev_b32 v62, 2, v0
          s_waitcnt vmcnt(0)''')
    stamp(e, 31)
    e(f'buffer_store_dword v{e.sreg}, v62, s[96:99], s95 offen')


def srd(e, d, p, nbytes):
    e(f'''s_mov_b32 s{d}, s{p}
          s_mov_b32 s{d+1}, s{p+1}
          s_mov_b32 s{d+2}, {nbytes}
          s_mov_b32 s{d+3}, 0x00020000''')


def spin(e, srdn, need, back=None):
    l0, l1 = e.label('L_spin'), back or e.label('L_spun')
    e(f's_mov_b32 s{S_SPIN}, 0x20000')
    e(f'{l0}:')
    e(f'''buffer_load_dword v{V_PD}, v{V_PA}, s[{srdn}:{srdn+3}], 0 offen sc1
          s_waitcnt vmcnt(0)
          v_cmp_gt_u32 vcc, {need}, v{V_PD}
          s_sub_u32 s{S_SPIN}, s{S_SPIN}, 1
          s_cbranch_scc1 {l1}
          s_cbranch_vccnz {l0}''')
    if back:
        e(f's_branch {back}')
    else:
        e(f'{l1}:')
        e.vmq = []


def poll_items(e, W, stream, pos, lag, srdn, need):
    slow, back = e.label('L_slow'), e.label('L_back')
    W.add(stream, 'm', pos, lambda: e.vm(f'buffer_load_dword v{V_PD}, v{V_PA}, s[{srdn}:{srdn+3}], 0 offen sc1', 'poll'), gap=1)
    W.add(stream, 's', pos + lag, lambda: e.wait(vm='poll'))
    W.add(stream, 'v', pos + lag, lambda: e(f'v_cmp_gt_u32 vcc, {need}, v{V_PD}'))
    W.add(stream, 's', pos + lag, lambda: e(f's_cbranch_vccnz {slow}\n{back}:'), gap=2)
    e.cold.append((slow, back, srdn, need))


def cold_code(e):
    for slow, back, srdn, need in e.cold:
        e(f'{slow}:')
        spin(e, srdn, need, back)
    e.cold = []


def set_flag(e, val, tmp=V_PD):
    e(f'v_mov_b32 v{tmp}, {val}')
    e.vm(f'buffer_store_dword v{tmp}, v{V_FLAG}, {WS}, 0 offen sc1', 'flag')


def pair_addr(e, lid0_sgpr_or_int):
    return [f'v_lshrrev_b32 v{V_PA}, 3, v0',
            f'v_bfe_u32 v{V_PD}, v0, 2, 1',
            f'v_lshl_add_u32 v{V_PA}, v{V_PA}, 5, v{V_PD}',
            f'v_add_lshl_u32 v{V_PA}, v{V_PA}, {lid0_sgpr_or_int}, 7']


def entry(e):
    e(f'''.globl {KN}
.p2align 8
.type {KN},@function''')
    e(f'{KN}:')
    e(f'''s_cmp_ge_u32 s2, 256
          s_cbranch_scc1 L_end
          s_load_dwordx16 s[24:39], s[0:1], 0
          s_load_dwordx4 s[40:43], s[0:1], 64
          v_lshrrev_b32 v1, 6, v0
          v_and_b32 v0, 63, v0
          s_and_b32 s64, s2, 7
          v_readfirstlane_b32 s{S_W}, v1
          s_lshr_b32 s65, s2, 3
          s_and_b32 s66, s64, 1
          s_and_b32 s67, s65, 3
          s_lshl_b32 s71, s67, 1
          s_add_u32 s71, s71, s66
          s_lshl_b32 s66, s66, 2
          s_add_u32 s{S_RT}, s66, s67
          s_lshl_b32 s{S_R}, s64, 2
          s_add_u32 s{S_R}, s{S_R}, s67
          s_lshr_b32 s66, s64, 1
          s_lshr_b32 s67, s65, 2
          s_mov_b32 s{S_CT}, s67''')
    e(f'''s_lshl_b32 s68, s66, 2
          s_and_b32 s69, s66, 2
          s_add_u32 s68, s68, s69
          s_add_u32 s{S_T}, s68, s67
          s_mov_b32 s{S_ROLE}, 0
          s_mov_b32 s{S_LID}, 0
          s_lshl_b32 s72, s66, 1
          s_add_u32 s68, s72, s67
          s_sub_u32 s68, s68, 4
          s_cmp_ge_u32 s67, 4
          s_cselect_b32 s{S_T}, s68, s{S_T}
          s_cselect_b32 s{S_ROLE}, 1, s{S_ROLE}
          s_cselect_b32 s{S_LID}, 18, s{S_LID}
          s_cmp_ge_u32 s67, 6
          s_cselect_b32 s{S_T}, s66, s{S_T}
          s_cselect_b32 s{S_ROLE}, 2, s{S_ROLE}
          s_cselect_b32 s{S_LID}, 26, s{S_LID}
          s_add_u32 s{S_LID}, s{S_LID}, s{S_T}
          s_bfe_u32 s73, s67, 0x10001
          s_add_u32 s72, s72, s73''')
    e(f'''s_lshr_b32 s68, s66, 1
          s_mul_i32 s73, s68, 3
          s_add_u32 s73, s73, 2
          s_xor_b32 s69, s66, s68
          s_xor_b32 s69, s69, s{S_RT}
          s_and_b32 s69, s69, 1
          s_lshl_b32 s70, s{S_RT}, 1
          s_add_u32 s70, s70, s68
          s_add_u32 s74, s68, 30
          s_add_u32 s68, s68, 8
          s_cmp_eq_u32 s69, 0
          s_cselect_b32 s74, s74, s68
          s_cselect_b32 s68, s70, s68
          s_cselect_b32 s69, 3, 0
          s_cmp_eq_u32 s67, 7
          s_cselect_b32 s{S_T}, s68, s{S_T}
          s_cselect_b32 s{S_ROLE}, s69, s{S_ROLE}
          s_cselect_b32 s{S_LID}, s74, s{S_LID}
          s_cselect_b32 s72, s73, s72''')
    e(f'''s_add_u32 s71, s71, s72
          s_and_b32 s71, s71, 7
          s_and_b32 s72, s71, 3
          s_cmp_eq_u32 s72, 2
          s_cselect_b32 s{S_TWO}, 0x3f803f80, 0
          s_lshl_b32 s71, s71, 2
          s_lshr_b32 s{S_PHI}, 0x97654210, s71
          s_and_b32 s{S_PHI}, s{S_PHI}, 15''')
    e(f'''s_lshl_b32 s68, s{S_RT}, 5
          s_add_u32 s68, s68, s{S_LID}
          s_lshl_b32 s68, s68, 7
          s_cmp_eq_u32 s{S_W}, 0
          s_cselect_b32 s68, s68, {OOB}
          v_mov_b32 v{V_FLAG}, {OOB}
          v_lshlrev_b32 v{V_L16}, 4, v0
          v_writelane_b32 v{V_FLAG}, s68, 0
          v_add_u32 v{V_L16+1}, 4096, v{V_L16}
          s_mul_i32 s{S_HO}, s{S_R}, 74
          s_add_u32 s{S_HO}, s{S_HO}, s{S_W}
          s_lshl_b32 s{S_HO}, s{S_HO}, 12
          s_add_u32 s{S_HO}, s{S_HO}, {WS_H}
          s_mul_i32 s{S_WO}, s{S_W}, 40960
          s_mul_i32 s68, s{S_CT}, 5120
          s_add_u32 s{S_WO}, s{S_WO}, s68
          s_add_u32 s{S_WO}, s{S_WO}, {WS_W2P}''')
    if STAMPS:
        e('v_mov_b32 v63, 0')
    e.sreg = 63


def srds(e):
    srd(e, SRD_WS, P_WS, WS_END)
    srd(e, SRD_A, P_OUT, 2621440)
    srd(e, SRD_D, P_DBG, 256)


def code_prefetch(e):
    lp = e.label('L_pc')
    e('s_getpc_b64 s[64:65]')
    e(f'{lp}:')
    e(f'''s_add_u32 s64, s64, {KN}-{lp}
          s_addc_u32 s65, s65, -1
          s_lshr_b32 s66, s2, 3
          s_lshl_b32 s66, s66, 2
          s_add_u32 s66, s66, s{S_W}
          v_lshrrev_b32 v61, 3, v0
          v_lshl_add_u32 v61, v61, 7, s66
          v_min_u32 v61, (L_end-{KN})/128, v61
          v_lshlrev_b32 v61, 7, v61''')
    e.vm('global_load_dword a255, v61, s[64:65]', 'code')


def stats_unit(e, base, srow):
    t = 240
    for q in range(8):
        e(f'v_mov_b32 v{t+q}, 0')
    for j in range(20):
        e.wait(vm=('S', base, j))
        for q in range(4):
            e(f'v_dot2c_f32_bf16 v{t+q}, v{base+4*j+q}, v236')
            e(f'v_dot2c_f32_bf16 v{t+4+q}, v{base+4*j+q}, v{base+4*j+q}')
    e(f'''s_nop 2
          v_add_f32 v{t}, v{t}, v{t+1}
          v_add_f32 v{t+4}, v{t+4}, v{t+5}
          v_add_f32 v{t+2}, v{t+2}, v{t+3}
          v_add_f32 v{t+6}, v{t+6}, v{t+7}
          v_add_f32 v{t}, v{t}, v{t+2}
          v_add_f32 v{t+4}, v{t+4}, v{t+6}
          s_nop 0
          v_add_f32_dpp v{t}, v{t}, v{t} quad_perm:[1,0,3,2] row_mask:0xf bank_mask:0xf
          v_add_f32_dpp v{t+4}, v{t+4}, v{t+4} quad_perm:[1,0,3,2] row_mask:0xf bank_mask:0xf
          s_nop 0
          v_add_f32_dpp v{t}, v{t}, v{t} quad_perm:[2,3,0,1] row_mask:0xf bank_mask:0xf
          v_add_f32_dpp v{t+4}, v{t+4}, v{t+4} quad_perm:[2,3,0,1] row_mask:0xf bank_mask:0xf
          v_mul_f32 v{t+1}, 0xbacccccd, v{t}
          v_mul_f32 v{t}, 0x3acccccd, v{t+4}
          v_fma_f32 v{t}, -v{t+1}, v{t+1}, v{t}
          v_cmp_gt_f32 vcc, 0, v{t}
          s_lshl_b32 s70, s{srow}, 3
          s_add_u32 s70, s70, {WS_STAT}
          v_cndmask_b32 v{t}, v{t}, v237, vcc
          v_cvt_pk_bf16_f32 v{t}, v{t}, v{t+1}
          v_and_b32 v244, 0xffff0000, v{t}
          v_lshlrev_b32 v{t}, 16, v{t}
          v_add_f32 v{t}, {hex(EPS5)}, v{t}
          v_cvt_pk_bf16_f32 v{t}, v{t}, v{t}
          v_lshlrev_b32 v{t}, 16, v{t}
          v_sqrt_f32 v{t}, v{t}
          s_nop 0
          v_cvt_pk_bf16_f32 v{t}, v{t}, v{t}
          v_lshlrev_b32 v{t}, 16, v{t}
          v_rcp_f32 v245, v{t}
          s_nop 0''')
    e.vm(f'buffer_store_dwordx2 v[244:245], v238, {WS}, s70 offen sc1', 'st')


def helper_role(e):
    hid = S_T
    e('s_waitcnt lgkmcnt(0)')
    srd(e, SRD_X, P_X, 2621440)
    srds(e)
    stamp(e, 0)
    stamp_reg(e, 255)
    B0 = 64
    e(f'''v_mov_b32 v237, 0
          s_lshl_b32 s64, s{S_W}, 13
          s_cmp_eq_u32 s{hid}, 0
          s_cselect_b32 s64, s64, {OOB}
          v_lshl_add_u32 v2, v0, 7, s64''')
    e.vm(f'buffer_store_dword v237, v2, {WS}, 0 offen sc1', 'z')
    e(f'''v_mov_b32 v236, 0x3f803f80
          v_lshrrev_b32 v3, 2, v0
          v_lshlrev_b32 v238, 3, v3
          v_mul_u32_u24 v3, 1280, v3
          v_and_b32 v4, 3, v0
          v_cmp_eq_u32 vcc, 0, v4
          v_lshl_add_u32 v3, v4, 4, v3
          v_mov_b32 v5, {OOB}
          s_lshl_b32 s64, s{hid}, 7
          v_cndmask_b32 v238, v5, v238, vcc
          s_lshl_b32 s65, s{S_W}, 5
          s_add_u32 s64, s64, s65
          s_add_u32 s65, s64, 16
          s_mul_i32 s66, s64, 1280
          s_mul_i32 s67, s65, 1280''')

    def sload(u, j):
        e.vm(f'buffer_load_dwordx4 {vr(B0+80*u+4*j,4)}, v3, s[{SRD_X}:{SRD_X+3}], s{66+u} offen offset:{64*j}', ('S', B0 + 80*u, j))
    for j in range(6):
        sload(0, j)
    code_prefetch_saved(e)
    e.wait(vm='z')
    e(f'''s_barrier
          s_or_b32 s68, s{hid}, s{S_W}
          s_cmp_eq_u32 s68, 0
          s_cselect_b32 s68, 0, {OOB}
          v_mov_b32 v6, 1
          v_writelane_b32 v5, s68, 0''')
    e.vm(f'buffer_store_dword v6, v5, s[{SRD_D}:{SRD_D+3}], 0 offen sc1', 'rdy')
    for j in range(6, 20):
        sload(0, j)
    for j in range(20):
        sload(1, j)
    e(f'''v_lshrrev_b32 v8, 5, v0
          v_bfe_u32 v9, v0, 3, 2
          v_mov_b32 v10, 1280
          v_lshrrev_b32 v11, 1, v9
          s_and_b32 s68, s{S_W}, 1
          s_lshl_b32 s68, s68, 1
          v_add_u32 v11, s68, v11
          v_lshlrev_b32 v11, 1, v11
          v_and_b32 v12, 7, v0
          v_xor_b32 v11, v11, v12
          v_lshlrev_b32 v11, 4, v11
          v_bfe_u32 v12, v0, 3, 2
          v_xor_b32 v12, s{S_W}, v12
          v_lshlrev_b32 v12, 5, v12
          v_and_b32 v13, 3, v0
          v_lshl_add_u32 v12, v13, 3, v12
          v_bfe_u32 v13, v0, 2, 2
          v_lshl_add_u32 v12, v13, 7, v12
          v_lshrrev_b32 v13, 4, v0
          v_lshl_add_u32 v12, v13, 10, v12''')

    def r_issue(u):
        e(f'''s_add_u32 s71, s{hid}, {16*u}
              s_sub_u32 s72, s71, 54
              s_mul_i32 s73, s72, 52
              s_lshr_b32 s73, s73, 8
              s_mul_i32 s74, s73, 5
              s_sub_u32 s74, s72, s74
              s_mul_i32 s73, s73, 160
              s_mul_i32 s75, s74, 40
              s_cmp_eq_u32 s74, 4
              s_cselect_b32 s75, 16, s75
              s_cselect_b32 s76, 80, 20
              s_cselect_b32 s77, 20, 1
              s_cselect_b32 s78, 1, 4
              s_add_u32 s73, s73, s75
              s_lshl_b32 s75, s71, 5
              s_cmp_lt_u32 s71, 54
              s_cselect_b32 s73, s75, s73
              s_cselect_b32 s76, 16, s76
              s_cselect_b32 s77, 1, s77
              s_cselect_b32 s78, 4, s78
              s_cselect_b32 s{SRD_A}, s{P_DOWN}, s{P_WO}
              s_cselect_b32 s{SRD_A+1}, s{P_DOWN+1}, s{P_WO+1}
              s_mov_b32 s75, {640*1280}
              s_cselect_b32 s{SRD_A+2}, {1728*1280}, s75
              s_mul_i32 s78, s78, s{S_W}
              s_add_u32 s73, s73, s78
              s_mul_i32 s73, s73, 1280
              v_mul_lo_u32 v14, v8, s76
              v_mul_lo_u32 v15, v9, s77
              v_add_u32 v14, v14, v15
              v_mad_u32_u24 v14, v14, v10, v11
              s_lshl_b32 s75, s{S_W}, 10''')
        for ln in range(10):
            e(f's_add_u32 m0, s75, {(u & 3)*40960 + ln*4096 - ln*128}\ns_nop 0')
            e.vm(f'buffer_load_dwordx4 v14, s[{SRD_A}:{SRD_A+3}], s73 offen offset:{ln*128} lds', ('R', u))

    def r_out(u):
        e(f'''s_add_u32 s71, s{hid}, {16*u}
              s_mul_i32 s69, s71, 40960
              s_lshl_b32 s70, s{S_W}, 10
              s_add_u32 s69, s69, s70
              s_add_u32 s69, s69, {WS_W2P}
              v_add_u32 v16, {(u & 3)*40960}, v12''')
        e.wait(vm=('R', u))
        e('s_barrier')
        d = B0 + 40 * (u & 1)

        def st(ln):
            e.wait(lg=('r', ln))
            e.vm(f'buffer_store_dwordx4 {vr(d+4*ln,4)}, v{V_L16}, {WS}, s69 offen sc1', 'Rs')
            e('s_add_u32 s69, s69, 4096')
        for ln in range(10):
            for hh in range(2):
                e.lds(f'ds_read_b64_tr_b16 {vr(d+4*ln+2*hh,2)}, v16 offset:{ln*4096+hh*512}', ('r', ln))
            if ln >= 3:
                st(ln - 3)
        for ln in range(7, 10):
            st(ln)

    stats_unit(e, B0, 64)
    stamp(e, 1)
    r_issue(0)
    stats_unit(e, B0 + 80, 65)
    stamp(e, 2)
    e(f'v_mov_b32 v{V_PA}, 0')
    spin(e, SRD_D, 1)
    e('s_barrier')
    set_flag(e, 1)
    stamp(e, 3)
    r_issue(1)
    r_out(0)
    r_issue(2)
    r_out(1)
    r_issue(3)
    r_out(2)
    l5 = e.label('L_no5')
    e(f's_cmp_ge_u32 s{hid}, 10\ns_cbranch_scc1 {l5}')
    sv = list(e.vmq)
    r_issue(4)
    r_out(3)
    r_out(4)
    l6 = e.label('L_rdone')
    e(f's_branch {l6}')
    e(f'{l5}:')
    e.vmq = sv
    r_out(3)
    e(f'{l6}:')
    e.drain()
    e('s_barrier')
    set_flag(e, 2)
    stamp(e, 4)
    srd(e, SRD_A, P_OUT, 2621440)
    for t in pair_addr(e, 30):
        e(t)
    spin(e, SRD_WS, 2)
    stamp(e, 5)
    stamp_reg(e, 63)
    for i in range(16):
        for k, f in w2_loads(e, i):
            f()


def code_prefetch_saved(e):
    e('s_mov_b64 s[68:69], s[64:65]\ns_mov_b32 s70, s66')
    code_prefetch(e)
    e('s_mov_b64 s[64:65], s[68:69]\ns_mov_b32 s66, s70')


def p1_setup(e):
    t = S_T
    e(f'''s_mul_i32 s64, s{t}, 192
          s_mul_i32 s65, s{t}, 160
          s_and_b32 s65, s65, 0xffffffc0
          s_add_u32 s65, s65, 1280
          s_mul_i32 s66, s{t}, 320
          s_cmp_eq_u32 s{S_ROLE}, 1
          s_cselect_b32 s65, s65, s66
          s_mov_b32 s66, 128
          s_cselect_b32 s66, 1280, s66
          s_add_u32 s66, s66, s65
          s_cmp_eq_u32 s{S_ROLE}, 0
          s_cselect_b32 s65, s64, s65
          s_cselect_b32 s66, s64, s66
          s_mov_b32 s{S_STR}, 3840
          s_cselect_b32 s{S_STR}, 3456, s{S_STR}
          s_lshl_b32 s{S_WFW}, s{S_STR}, 6
          s_mov_b32 s{S_WFW+1}, 0
          s_mul_i32 s{S_WBK}, s{S_WFW}, -9
          s_mov_b32 s{S_WBK+1}, -1
          s_lshl_b32 s64, s{S_PHI}, 2
          s_add_u32 s64, s64, s{S_W}
          s_lshl_b32 s64, s64, 4
          v_bfe_u32 v24, v0, 2, 3
          v_add_u32 v24, s64, v24
          v_mul_lo_u32 v24, v24, s{S_STR}
          v_mov_b32 v20, s65
          v_mov_b32 v21, s66
          v_cmp_lt_u32 vcc, 31, v0
          v_and_b32 v25, 3, v0
          v_mov_b32 v27, 0
          v_cndmask_b32 v20, v20, v21, vcc
          v_add_u32 v24, v24, v20
          v_lshl_add_u32 v26, v25, 4, v24
          v_xor_b32 v25, 2, v25
          v_lshl_add_u32 v28, v25, 4, v24
          s_lshl_b32 s64, s{S_STR}, 3
          v_add_u32 v28, s64, v28
          v_mov_b32 v29, 0
          v_lshrrev_b32 v20, 3, v0
          v_mul_u32_u24 v20, 1280, v20
          s_lshl_b32 s64, s{S_PHI}, 7
          v_add_u32 v20, s64, v20
          v_and_b32 v21, 7, v0
          v_lshrrev_b32 v22, 4, v0
          v_xor_b32 v21, v21, v22
          v_lshl_add_u32 v{V_XD}, v21, 4, v20
          v_xor_b32 v21, 4, v21
          v_lshl_add_u32 v{V_XD+1}, v21, 4, v20
          v_add_u32 v{V_XD+1}, {8*1280}, v{V_XD+1}
          s_lshl_b32 s64, s{S_RT}, 2
          s_add_u32 s64, s64, s{S_W}
          s_mul_i32 s{S_XO}, s64, {64*1280}
          s_add_u32 s{S_XO+1}, s{S_XO}, {16*1280}
          s_add_u32 s{S_XO+2}, s{S_XO}, {32*1280}
          s_add_u32 s{S_XO+3}, s{S_XO}, {48*1280}
          s_lshl_b32 s{S_XD}, s{S_W}, 13
          s_lshl_b32 s{S_WD}, s{S_W}, 11
          s_add_u32 s{S_WD}, s{S_WD}, {L_W}
          s_mov_b32 s{SRD_X+2}, 2621440
          s_mov_b32 s{SRD_X+3}, 0x00020000
          s_cmp_eq_u32 s{S_ROLE}, 0
          s_waitcnt lgkmcnt(0)
          s_cselect_b64 s[64:65], s[{P_GATE}:{P_GATE+1}], s[{P_QKV}:{P_QKV+1}]
          s_cselect_b64 s[66:67], s[{P_UP}:{P_UP+1}], s[{P_QKV}:{P_QKV+1}]
          s_mov_b32 s{SRD_X}, s{P_X}
          s_mov_b32 s{SRD_X+1}, s{P_X+1}
          v_mov_b32 v20, s64
          v_mov_b32 v21, s65
          v_mov_b32 v22, s66
          v_mov_b32 v23, s67
          v_cndmask_b32 v20, v20, v22, vcc
          v_cndmask_b32 v21, v21, v23, vcc
          v_lshl_add_u64 {vr(V_WD,2)}, v[26:27], 0, v[20:21]
          v_lshl_add_u64 {vr(V_WD+2,2)}, v[28:29], 0, v[20:21]''')
    stamp(e, 0)
    for kind, f, g in dma_list(e, 0):
        f()
    srds(e)
    code_prefetch(e)
    e(f'''v_and_b32 v20, 15, v0
          v_lshrrev_b32 v21, 1, v20
          v_lshrrev_b32 v22, 4, v0
          v_xor_b32 v21, v21, v22
          v_lshlrev_b32 v20, 7, v20
          v_add_u32 v20, s{S_XD}, v20
          v_lshl_add_u32 v{V_XR}, v21, 4, v20
          v_xor_b32 v21, 4, v21
          v_lshl_add_u32 v{V_XR+1}, v21, 4, v20
          v_lshrrev_b32 v21, 4, v0
          v_bfe_u32 v22, v0, 2, 2
          v_lshlrev_b32 v20, 10, v21
          v_lshl_add_u32 v20, v22, 6, v20
          v_add_u32 v20, {L_W}, v20
          v_and_b32 v21, 1, v21
          v_lshlrev_b32 v21, 5, v21
          v_and_b32 v22, 3, v0''')
    e(f'''s_and_b32 s64, s{S_W}, 1
          s_mul_i32 s64, s64, 96
          s_lshr_b32 s65, s{S_W}, 1
          s_lshl_b32 s65, s65, 9''')
    for k in range(3):
        e(f'v_lshl_add_u32 v23, v22, 3, s64\nv_add_u32 v23, {32*k}, v23')
        wr_addr(e, V_CR + k, 23)
        e(f'v_add_u32 v{V_CR+k}, s65, v{V_CR+k}')
    for r in range(4):
        e(f'v_mov_b32 v{V_ONE+r}, 0x3f803f80')


def dma_list(e, n):
    fs = []
    tag = ('D', n)
    wb, xb = (n % 3) * 24576, (n & 1) * 32768
    if n < 9:
        fs.append(('s', lambda: e(f'''s_cmp_eq_u32 s{S_PHI}, {9-n}
                                      s_cselect_b64 s[{S_DW}:{S_DW+1}], s[{S_WBK}:{S_WBK+1}], s[{S_WFW}:{S_WFW+1}]
                                      s_cselect_b32 s{S_DX}, -18, 2'''), 3))
    for i in range(2):
        for sg in range(3):
            fs.append(('s', lambda i=i, sg=sg: e(f's_add_u32 m0, s{S_WD}, {wb + sg*8192 + i*1024 - sg*64}'), 1))
            fs.append(('m', lambda i=i, sg=sg: (e.pad_m0(), e.vm(f'global_load_lds_dwordx4 {vr(V_WD+2*i,2)}, off offset:{64*sg}', tag)), 1))
        if n < 9:
            fs.append(('v', lambda i=i: e(f'v_lshl_add_u64 {vr(V_WD+2*i,2)}, {vr(V_WD+2*i,2)}, 0, s[{S_DW}:{S_DW+1}]'), 1))
        for k in range(4):
            fs.append(('s', lambda i=i, k=k: e(f's_add_u32 m0, s{S_XD}, {xb + (2*k+i)*1024}'), 1))
            fs.append(('m', lambda i=i, k=k: (e.pad_m0(), e.vm(f'buffer_load_dwordx4 v{V_XD+i}, s[{SRD_X}:{SRD_X+3}], s{S_XO+k} offen lds', tag)), 1))
        if n < 9:
            fs.append(('v', lambda i=i: e(f'v_lshl_add_u32 v{V_XD+i}, s{S_DX}, 6, v{V_XD+i}'), 1))
    return fs


class Role:
    def __init__(self, kind):
        self.kind = kind
        if kind == 'ffn':
            self.blocks = [(V_WR + (a & 1), (a >> 1) * 8192 + mt * 512) for a in range(6) for mt in range(2)]
        elif kind == 'kv':
            self.blocks = [(V_WR + a, mt * 512) for mt in range(2) for a in range(5)]
        else:
            self.blocks = [(V_WR + a, 0) for a in range(10)]
        self.nb = len(self.blocks)
        self.swapped = kind != 'kv'

    def acc(self, b, rb):
        return V_ACC + (b * 4 + rb) * 4

    def waddr(self, b, s):
        reg, imm = self.blocks[b]
        imm += (s % 3) * 24576
        if self.kind == 'ffn' and s % 3 == 2:
            reg, imm = reg + 2, imm - 24576
        return reg, imm

    def cs_read(self, b, dst):
        if self.kind == 'ffn':
            return f'ds_read_b128 {vr(dst,4)}, v{V_CA} offset:{L_M - 131072 + 384*(b&1) + 64*(b>>1)}'
        if self.kind == 'q':
            g, i = divmod(b, 5)
            return f'ds_read_b128 {vr(dst,4)}, v{V_CA + (i == 4)} offset:{L_M - 131072 + 448*g + (80*i if i < 4 else 64)}'
        g, i = divmod(b, 5)
        return f'ds_read_b32 v{dst}, v{V_CA + (i == 4)} offset:{L_M - 131072 + 384*g + (80*i if i < 4 else 64)}'


def wr_addr(e, dst, byte):
    e(f'''v_lshrrev_b32 v24, 6, v{byte}
          v_and_b32 v25, 63, v{byte}
          v_xor_b32 v25, v25, v21
          v_lshl_add_u32 v24, v24, 13, v20
          v_add_u32 v{dst}, v24, v25''')


def p1_role_setup(e, R):
    if R.kind == 'ffn':
        for hb in range(2):
            e(f'v_lshlrev_b32 v23, 3, v22\nv_add_u32 v23, {32*hb}, v23')
            wr_addr(e, V_WR + hb, 23)
            e(f'v_add_u32 v{V_WR+2+hb}, 24576, v{V_WR+hb}')
    else:
        for g in range(2 if R.kind == 'q' else 1):
            if R.kind == 'kv':
                e(f's_and_b32 s64, s{S_T}, 1\ns_lshl_b32 s64, s64, 5')
            else:
                e(f's_mov_b32 s64, {32*g}')
            for i in range(5):
                if i < 4:
                    e(f'v_lshl_add_u32 v23, v22, 3, s64\nv_add_u32 v23, {40*i}, v23')
                else:
                    e(f'v_mul_u32_u24 v23, 40, v22\nv_add_u32 v23, s64, v23\nv_add_u32 v23, 32, v23')
                wr_addr(e, V_WR + 5 * g + i, 23)
                if g:
                    e(f'v_add_u32 v{V_WR+5*g+i}, 512, v{V_WR+5*g+i}')
    if R.swapped:
        e(f'''v_lshrrev_b32 v23, 4, v0
              v_mul_u32_u24 v24, 80, v23
              v_lshlrev_b32 v23, 4, v23
              v_add_u32 v{V_CA}, 0x20000, v23
              v_add_u32 v{V_CA+1}, 0x20000, v24''')
    else:
        e(f'''s_lshl_b32 s64, s64, 1
              s_add_u32 s64, s64, 0x20000
              v_and_b32 v23, 15, v0
              v_lshl_add_u32 v{V_CA}, v23, 2, s64
              v_lshrrev_b32 v23, 2, v23
              v_mul_u32_u24 v23, 80, v23
              v_lshl_add_u32 v23, v22, 2, v23
              v_add_u32 v{V_CA+1}, s64, v23''')


def w2_reg(i):
    if i < 8:
        return 'a', 96 + 20 * i
    if i < 12:
        return 'a', 20 * (i - 8)
    if i < 16:
        return 'v', 176 + 20 * (i - 12)
    return 'a', 96 + 20 * (i - 16)


def w2_loads(e, i):
    f, d = w2_reg(i)
    fs = []
    sd = SRD_WS
    if i == 13:
        sd = SRD_Z
        fs.append(('s', lambda: (srd(e, SRD_Z, P_WS, WS_END), e(f's_cmp_lt_u32 s{S_W}, 2\ns_cselect_b32 s{SRD_Z+2}, s{SRD_Z+2}, 0'))))
    for b in range(5):
        fs.append(('m', lambda b=b: e.vm(f'buffer_load_dwordx4 {vr(d+4*b,4,f)}, v{V_L16 + (b == 4)}, s[{sd}:{sd+3}], s{S_WO} offen offset:{1024*(b&3)} sc1', ('w2', i))))
    fs.append(('s', lambda: e(f's_add_u32 s{S_WO}, s{S_WO}, {(2 if i == 13 else 4)*40960}')))
    return fs


def corr_order(nb, start, step):
    N = nb * 8

    def ok(b, t0):
        d = (t0 - (8 * b + 8)) % N
        return d >= 8 and d + step + 3 <= N - 8

    def rec(k, left):
        if not left:
            return []
        for b in sorted(left):
            if ok(b, start + k * step):
                r = rec(k + 1, left - {b})
                if r is not None:
                    return [b] + r
        return None
    r = rec(0, frozenset(range(nb)))
    assert r is not None
    return r


def p1_main(e, R):
    nb = R.nb
    N = nb * 8
    W = Weaver(e)
    pos = {}

    def xread(xb, rb, ks):
        e.lds(f'ds_read_b128 {ar(A_X + xb*32 + rb*8 + ks*4, 4)}, v{V_XR+ks} offset:{xb*32768 + rb*2048}', ('x', xb))

    def wread(gb, ks, hh):
        s, b = divmod(gb, nb)
        reg, imm = R.waddr(b, s)
        e.lds(f'ds_read_b64_tr_b16 {ar(A_W + (gb&3)*8 + ks*4 + hh*2, 2)}, v{reg} offset:{imm + ks*4096 + hh*256}', ('w', gb))

    CSB = 3
    for s in range(10):
        for b in range(nb):
            gb = s * nb + b
            for rb in range(4):
                for kk in range(2):
                    ks = kk ^ (rb & 1)

                    def m(s=s, b=b, gb=gb, rb=rb, ks=ks, kk=kk):
                        assert ('w', gb) not in e.lgq and ('x', s & 1) not in e.lgq
                        a = ar(A_W + (gb & 3)*8 + ks*4, 4)
                        x = ar(A_X + (s & 1)*32 + rb*8 + ks*4, 4)
                        acc = vr(R.acc(b, rb), 4)
                        c = '0' if (s == 0 and kk == 0) else acc
                        e(f'v_mfma_f32_16x16x32_bf16 {acc}, {a}, {x}, {c}' if R.swapped else f'v_mfma_f32_16x16x32_bf16 {acc}, {x}, {a}, {c}')
                    i = W.main(m)
                    pos.setdefault((s, b), i)
            if s < 2 and b == CSB:
                for k in range(3):
                    for ks in range(2):
                        def m(s=s, k=k, ks=ks):
                            assert 'c' not in e.lgq
                            acc = vr(V_T + 4*k, 4)
                            c = '0' if (s == 0 and ks == 0) else acc
                            e(f'v_mfma_f32_16x16x32_bf16 {acc}, {vr(V_ONE,4)}, {ar(A_C + 8*k + 4*ks, 4)}, {c}')
                        i = W.main(m)
                        pos.setdefault((s, 'c'), i)
    pos[(10, 0)] = len(W.mains)
    P = lambda s, b: pos[(s, b)]
    sync = {}
    for s in range(10):
        for b in range(nb):
            gb = s * nb + b
            p = P(s, b)
            o = 0
            if b == nb - 2 and s < 9:
                sync[s] = p + 2

                def do_sync(s=s):
                    e.wait(vm=[('D', s + 1)] + (['csp'] if s == 1 else []), lg='*')
                    e('s_barrier')
                W.add('w', 's', p + 2, do_sync, due=p + 2, n=2)
                o = 3
            if gb + 2 < 10 * nb:
                for ks in range(2):
                    for hh in range(2):
                        q = p + o + ks*2 + hh
                        W.add('w', 'd', q, lambda gb=gb, ks=ks, hh=hh: wread(gb + 2, ks, hh), due=q)
            if s < 2 and b < 3:
                for ks in range(2):
                    for hh in range(2):
                        q = p + 4 + ks*2 + hh
                        if ks == 1 and hh == 1:
                            W.add('w', 's', q, lambda gb=gb: e.wait(lg=('w', gb + 1)), due=q)
                        W.add('w', 'd', q, lambda s=s, b=b, ks=ks, hh=hh: e.lds(
                            f'ds_read_b64_tr_b16 {ar(A_C + 8*b + ks*4 + hh*2, 2)}, v{V_CR+b} offset:{s*24576 + ks*4096 + hh*256}', 'c'), due=q)
                continue
            if s < 9 and b in (nb - 4, nb - 3):
                if b == nb - 4:
                    W.add('w', 's', p + 4, lambda s=s: e.wait(vm=('D', s + 1)), due=p + 4)
                for k in range(4):
                    kk = (b - (nb - 4)) * 4 + k
                    if k == 3:
                        W.add('w', 's', p + 7, lambda gb=gb: e.wait(lg=('w', gb + 1)), due=p + 7)
                    W.add('w', 'd', p + 4 + k, lambda s=s, kk=kk: xread((s + 1) & 1, kk >> 1, kk & 1), due=p + 4 + k)
                continue
            if gb + 1 < 10 * nb:
                W.add('w', 's', p + 7, lambda gb=gb, s=s, b=b: e.wait(lg=[('w', gb + 1), 'c']), due=p + 7)
    pre = OPT['pre_' + R.kind]
    nd = 0
    for n in range(1, 10):
        k = 0
        for kind, f, cnt in dma_list(e, n):
            want = int((nd - pre + 1) * OPT['rate'])
            if n >= 3:
                want = max(want, sync[n - 3] + 1 + int(k * (N - 4) / 14.0))
            elif n == 2:
                want = max(want, 0)
            if nd < pre:
                want = -1
            due = P(n - 1, nb - 4) + 2
            if kind == 'm':
                W.add('dma', 'm', min(want, due), f, due=due, gap=1)
                nd += 1
                k += 1
            else:
                W.add('dma', kind, min(max(want - 2, -1) if want >= 0 else -1, due - 1), f, n=cnt)
    A = lambda kind, p, f, **kw: W.add('aux', kind, p, f, **kw)
    T = lambda t: (lambda: e(t))
    p = P(0, 'c') + 6
    for r in range(4):
        A('v', p, T(f'v_mov_b32 v{V_ONE+r}, s{S_TWO}'), due=P(1, 'c') - 3)
    A('v', p, T(f'v_mov_b32 v{V_PA}, 0'))
    A('v', p, T(f'v_lshlrev_b32 v61, 2, v0'))
    A('v', p, T(f'v_cmp_lt_u32 vcc, 47, v0'))
    A('v', p, T(f'v_mov_b32 v62, {OOB}'))
    A('v', p, T(f'v_cndmask_b32 v61, v61, v62, vcc'), gap=2)
    A('s', p, T(f's_mul_i32 s64, s{S_LID}, {8*768}\ns_add_u32 s64, s64, {WS_CSP}'), n=2)
    A('s', p, T(f's_mul_i32 s65, s{S_RT}, 768\ns_add_u32 s65, s65, s64'), n=2)
    A('s', p, T(f's_mul_i32 s66, s{S_W}, 192\ns_add_u32 s65, s65, s66'), n=2)
    A('s', p, T('s_mov_b32 s66, 0xffff0000\ns_mov_b32 s67, 0'), n=2)
    A('s', p, T('s_mov_b32 s68, 0\ns_mov_b32 s69, -1'), n=2)
    poll_items(e, W, 'aux', P(0, nb - 2), 48, SRD_D, 1)
    p = P(1, 'c') + 6 + 8
    A('v', p, T(f'v_cndmask_b32 v{V_T}, v{V_T}, v{V_T+4}, s[66:67]'))
    A('v', p, T(f'v_cndmask_b32 v{V_T}, v{V_T}, v{V_T+8}, s[68:69]'))
    A('m', p, lambda: e.vm(f'buffer_store_dword v{V_T}, v61, {WS}, s65 offen sc1', 'csp'), gap=1, due=sync[1] - 1)
    A('v', p, T(f'v_mov_b32 v{V_PD}, 1'))
    A('m', sync[1] + 1, lambda: e.vm(f'buffer_store_dword v{V_PD}, v{V_FLAG}, {WS}, 0 offen sc1', 'flag'), gap=1)
    p = sync[1] + 4
    A('s', p, T(f's_lshr_b32 s66, s{S_W}, 1\ns_add_u32 s66, s66, 30'), n=2)
    A('s', p, T(f's_lshl_b32 s67, s{S_RT}, 5\ns_add_u32 s66, s66, s67'), n=2)
    A('v', p, T(f'v_lshrrev_b32 v{V_PA}, 2, v0'))
    A('v', p, T(f'v_lshl_add_u32 v{V_PA}, v{V_PA}, 5, s{S_LID}'))
    A('v', p, T(f'v_mov_b32 v62, s66'))
    A('v', p, T(f'v_cndmask_b32 v{V_PA}, v{V_PA}, v62, s[68:69]'))
    A('v', p, T(f'v_lshlrev_b32 v{V_PA}, 7, v{V_PA}'))
    A('s', p, T(f's_min_u32 s66, s{S_W}, 2\ns_lshl_b32 s66, s66, 8'), n=2)
    A('v', p, T(f'v_lshl_add_u32 v61, v0, 2, s66'))
    A('s', p, T(f's_add_u32 s65, s64, {4*768}'))
    A('s', p, T(f's_lshl_b32 s66, s{S_RT}, 2\ns_add_u32 s66, s66, s{S_W}'), n=2)
    A('s', p, T(f's_lshl_b32 s66, s66, 9\ns_add_u32 s66, s66, {WS_STAT}'), n=2)
    if R.swapped:
        A('v', p, T('v_and_b32 v62, 15, v0'))
        A('v', p, T('v_lshlrev_b32 v62, 3, v62'))
    else:
        A('v', p, T('v_lshrrev_b32 v62, 4, v0'))
        A('v', p, T('v_lshlrev_b32 v62, 5, v62'))
    SC = OPT.get('sc_' + R.kind, 3 if R.kind == 'ffn' else 4)
    p = P(SC, 0) + OPT.get('sco', 24)
    poll_items(e, W, 'aux', p, 48, SRD_WS, 1)
    p += 50
    for k in range(8):
        A('m', p, lambda k=k: e.vm(f'buffer_load_dword v{V_T+k}, v61, {WS}, s{64 + (k >> 2)} offen offset:{768*(k&3)} sc1', 'cl'))
    if R.swapped:
        for rb in range(4):
            A('m', p, lambda rb=rb: e.vm(f'buffer_load_dwordx2 {vr(V_ST+2*rb,2)}, v62, {WS}, s66 offen offset:{128*rb} sc1', 'cl'))
    else:
        for k in range(8):
            A('m', p, lambda k=k: e.vm(f'buffer_load_dwordx4 {vr(224+4*k,4)}, v62, {WS}, s66 offen offset:{128*(k>>1)+16*(k&1)} sc1', 'cl'))
    p = sync[SC + 1] - 16
    A('s', p, lambda: e.wait(vm='cl'))
    for k in (0, 2, 4, 6):
        A('v', p, T(f'v_add_f32 v{V_T+k}, v{V_T+k}, v{V_T+k+1}'))
    for k in (0, 4):
        A('v', p, T(f'v_add_f32 v{V_T+k}, v{V_T+k}, v{V_T+k+2}'))
    A('v', p, T(f'v_add_f32 v{V_T}, v{V_T}, v{V_T+4}'))
    A('v', p, T('v_add_u32 v61, 0x20000, v61'))
    A('d', p, lambda: e.lds(f'ds_write_b32 v61, v{V_T} offset:{L_M - 131072}', 'cw'), gap=1, due=sync[SC + 1] - 1)
    step = OPT.get('cstep', 22)
    t0 = sync[SC + 1] + 8
    base = P(2, 0)
    order = corr_order(nb, t0 - base, step)
    A('d', sync[SC + 1] + 1, lambda: e.lds(R.cs_read(order[0], V_CS), ('cs', 0)))
    for k, b in enumerate(order):
        tk = t0 + k * step
        d = V_CS + 4 * (k & 1)
        if k + 1 < nb:
            A('d', tk, lambda k=k: e.lds(R.cs_read(order[k + 1], V_CS + 4 * ((k + 1) & 1)), ('cs', k + 1)), gap=1)
        A('s', tk, lambda k=k: e.wait(lg=('cs', k)))
        for rb in range(4):
            for r in range(4):
                a = R.acc(b, rb) + r
                t = f'v_fmac_f32 v{a}, v{V_ST+2*rb}, v{d+r}' if R.swapped else f'v_fmac_f32 v{a}, v{224+8*rb+2*r}, v{d}'
                A('v', tk, T(t), due=tk + step - 1)
    B = lambda kind, p, f, **kw: W.add('w2', kind, p, f, **kw)
    p = P(7, 0)
    for t in pair_addr(e, 30):
        B('v', p, T(t))
    poll_items(e, W, 'w2', p + 8, 48, SRD_WS, 2)
    p = max(p + 60, sync[7] - 8)
    n = 0
    for i in range(8):
        for kind, f in w2_loads(e, i):
            B(kind, p + int(n * (P(10, 0) - p) / 41.0), f)
            n += kind == 'm'
    if STAMPS:
        for s in (2, 4, 6, 8):
            W.add('st', 's', P(s, 0), lambda s=s: stamp(e, 8 + s // 2), due=P(s, 0))

    def first():
        stamp(e, 1)
        e.wait(vm=('D', 0))
        e('s_barrier')
        stamp(e, 2)
        for ks in range(2):
            for hh in range(2):
                wread(0, ks, hh)
        for rb in range(4):
            for ks in range(2):
                xread(0, rb, ks)
        for ks in range(2):
            for hh in range(2):
                wread(1, ks, hh)
        e.wait(lg=[('w', 0), ('x', 0)])
    m0 = W.mains[0]
    W.mains[0] = lambda: (first(), m0())
    W.run()
    print(R.kind, 'forced', W.forced, 'left over', W.left_over, file=sys.stderr)


def h_base(e, dst, step):
    e(f'''s_lshl_b32 s{dst}, s{S_RT}, 2
          s_add_u32 s{dst}, s{dst}, s{S_W}
          s_mul_i32 s{dst}, s{dst}, 74
          s_add_u32 s{dst}, s{dst}, s{step}
          s_lshl_b32 s{dst}, s{dst}, 12
          s_add_u32 s{dst}, s{dst}, {WS_H}''')


def publish(e, tag, w2_before, w2_after):
    for i in w2_before:
        for k, f in w2_loads(e, i):
            f()
    e.wait(vm=tag)
    e('s_barrier')
    set_flag(e, 2)
    for i in w2_after:
        for k, f in w2_loads(e, i):
            f()


def ffn_epilogue(e, R):
    C1, C2 = 10, 14
    for rb in range(4):
        e(f'''v_mul_f32 v{C1+rb}, {hex(NLOG2E)}, v{V_ST+1+2*rb}
              v_mul_f32 v{C2+rb}, v{V_ST+1+2*rb}, v{V_ST+1+2*rb}
              v_rcp_f32 v{C2+rb}, v{C2+rb}''')
    e(f's_mul_i32 s65, s{S_T}, 3')
    h_base(e, 64, 65)
    w2 = [it for i in range(8, 12) for it in w2_loads(e, i)]
    for a in range(6):
        for rb in range(4):
            g = R.acc(2*a, rb)
            u = R.acc(2*a + 1, rb)
            t = V_T + 4 * (rb & 1)
            for _ in range(2):
                if w2:
                    w2.pop(0)[1]()
            for r in range(4):
                e(f'v_mul_f32 v{t+r}, v{C1+rb}, v{g+r}')
            for r in range(4):
                e(f'v_exp_f32 v{t+r}, v{t+r}')
            for r in (0, 2):
                e(f'v_pk_mul_f32 {vr(g+r,2)}, {vr(g+r,2)}, {vr(u+r,2)}')
            for r in range(4):
                e(f'v_fma_f32 v{t+r}, v{t+r}, v{C2+rb}, v{C2+rb}')
            for r in range(4):
                e(f'v_rcp_f32 v{t+r}, v{t+r}')
            e('s_nop 0')
            for r in (0, 2):
                e(f'v_pk_mul_f32 {vr(g+r,2)}, {vr(g+r,2)}, {vr(t+r,2)}')
            o = R.acc(2*(a & ~1) + 1, rb) + 2 * (a & 1)
            e(f'v_cvt_pk_bf16_f32 v{o}, v{g}, v{g+1}\nv_cvt_pk_bf16_f32 v{o+1}, v{g+2}, v{g+3}')
            if a & 1:
                e.vm(f'buffer_store_dwordx4 {vr(o-2,4)}, v{V_L16}, {WS}, s64 offen offset:{1024*rb} sc1', 'hs')
        if a & 1:
            e('s_add_u32 s64, s64, 4096')
    assert not w2
    stamp(e, 6)
    publish(e, 'hs', [12, 13], [14, 15])


def phi4(e, a, rstd, c1, t, veps):
    for r in range(4):
        e(f'v_mul_f32 v{t+r}, v{c1(r)}, v{a+r}')
    for r in range(4):
        e(f'v_exp_f32 v{t+r}, v{t+r} clamp')
    for r in range(4):
        e(f'v_fma_f32 v{a+r}, v{a+r}, v{rstd(r)}, v{veps}')
    for r in range(4):
        e(f'v_max_f32 v{a+r}, v{a+r}, v{veps}')
    for r in (0, 2):
        e(f'v_pk_add_f32 {vr(a+r,2)}, {vr(a+r,2)}, {vr(t+r,2)}')


def kv_epilogue(e, R):
    e(f'v_mov_b32 v12, {hex(EPS6)}')
    for i in range(4):
        m = 0xffff << (16 * i)
        e(f's_mov_b32 s{S_M+2*i}, {hex(m & 0xffffffff)}\ns_mov_b32 s{S_M+2*i+1}, {hex(m >> 32)}')
        m = (0xf << (4 * i)) * 0x10001
        e(f's_mov_b32 s{S_M+8+2*i}, {hex(m)}\ns_mov_b32 s{S_M+8+2*i+1}, {hex(m)}')
    for r in range(4):
        e(f'v_mov_b32 v{V_ONE+r}, 0x3f803f80')
    for k in range(16):
        e(f'v_mul_f32 v{224+2*k}, {hex(LOG2E)}, v{225+2*k}')
    ones = vr(V_ONE, 4)
    for rb in range(4):
        S = 224 + 8 * rb
        for b in range(10):
            a = R.acc(b, rb)
            if b < 5:
                phi4(e, a, lambda r: S + 1 + 2*r, lambda r: S + 2*r, V_T, 12)
            else:
                for r in range(4):
                    e(f'v_mul_f32 v{a+r}, v{S+1+2*r}, v{a+r}')
            o = R.acc(b, rb & ~1) + 2 * (rb & 1)
            e(f'v_cvt_pk_bf16_f32 v{o}, v{a}, v{a+1}\nv_cvt_pk_bf16_f32 v{o+1}, v{a+2}, v{a+3}')
        if rb & 1:
            e('s_nop 1')
            op = lambda b: vr(R.acc(b, rb - 1), 4)
            c = (lambda k: '0') if rb == 1 else (lambda k: ar(4*k, 4))
            pairs = [(op(i), op(5 + i)) for i in range(4)] + [(op(4), op(5 + i)) for i in range(4)]
            pairs += [(op(i), op(9)) for i in range(4)] + [(op(i), ones) for i in range(4)]
            pairs += [(op(4), op(9)), (op(4), ones)]
            for k, (A_, B_) in enumerate(pairs):
                e(f'v_mfma_f32_16x16x32_bf16 {ar(4*k,4)}, {A_}, {B_}, {c(k)}')
    e('s_nop 7')
    stamp(e, 6)
    for k in range(16, 72):
        e(f'v_accvgpr_read_b32 v{64+k}, a{k}')
    e('s_nop 1')
    for grp, mb in ((1, S_M), (2, S_M + 8), (3, S_M + 8)):
        for i in range(1, 4):
            for r in range(4):
                e(f'v_cndmask_b32 v{64+16*grp+r}, v{64+16*grp+r}, v{64+16*grp+4*i+r}, s[{mb+2*i}:{mb+2*i+1}]')
    e('s_mov_b32 s64, 0x00f0000f\ns_mov_b32 s65, 0xf0000f00')
    for r in range(4):
        e(f'v_cndmask_b32 v{128+r}, v{132+r}, v{128+r}, s[64:65]')
    e(f'''s_lshl_b32 s64, s{S_W}, 10
          v_add_u32 v20, s64, v{V_L16}
          s_lshl_b32 s64, s{S_W}, 13
          v_add_u32 v21, s64, v{V_L16}''')
    for k in range(4):
        e.lds(f'ds_write_b128 v20, {ar(4*k,4)} offset:{4096*k}', 'tw')
    for k in range(4):
        e.lds(f'ds_write_b128 v20, {vr(80+16*k,4)} offset:{4096*(4+k)}', 'tw')
    e.wait(lg='*')
    e('s_barrier')
    for k in range(8):
        e.lds(f'ds_read_b128 {vr(64+4*k,4)}, v21 offset:{1024*k}', ('tr', k >> 2))
    e(f'''s_lshl_b32 s64, s{S_T}, 3
          s_add_u32 s64, s64, s{S_RT}
          s_lshl_b32 s64, s64, 2
          s_add_u32 s64, s64, s{S_W}
          s_lshl_b32 s64, s64, 11
          s_add_u32 s64, s64, {WS_KVP}''')
    for k in range(2):
        e.wait(lg=('tr', k))
        b = 64 + 16 * k
        for r in range(4):
            e(f'v_add_f32 v{b+r}, v{b+r}, v{b+4+r}\nv_add_f32 v{b+8+r}, v{b+8+r}, v{b+12+r}')
        for r in range(4):
            e(f'v_add_f32 v{b+r}, v{b+r}, v{b+8+r}')
        e.vm(f'buffer_store_dwordx4 {vr(b,4)}, v{V_L16}, {WS}, s64 offen offset:{1024*k} sc1', 'ks')
    stamp(e, 7)
    publish(e, 'ks', [], range(8, 16))


def q_epilogue(e, R):
    e(f'v_mov_b32 v18, {hex(EPS6)}')
    for rb in range(4):
        e(f'v_mul_f32 v{V_ST+2*rb}, {hex(LOG2E)}, v{V_ST+1+2*rb}')
    w2 = [it for i in range(8, 12) for it in w2_loads(e, i)]
    for g in range(2):
        for i in range(5):
            b = 5 * g + i
            for rb in range(4):
                a = R.acc(b, rb)
                if w2:
                    w2.pop(0)[1]()
                phi4(e, a, lambda r: V_ST + 1 + 2*rb, lambda r: V_ST + 2*rb, V_T, 18)
                if i < 4:
                    e(f'v_cvt_pk_bf16_f32 v{a}, v{a}, v{a+1}\nv_cvt_pk_bf16_f32 v{a+1}, v{a+2}, v{a+3}')
                else:
                    for ii in range(4):
                        o = R.acc(5*g + ii, rb) + 2
                        e(f'v_cvt_pk_bf16_f32 v{o}, v{a}, v{a+1}\nv_cvt_pk_bf16_f32 v{o+1}, v{a+2}, v{a+3}')
    assert not w2
    e(f'''v_lshlrev_b32 v2, 3, v0
          v_lshrrev_b32 v20, 4, v0
          v_and_b32 v21, 15, v0
          v_lshrrev_b32 v22, 2, v21
          v_and_b32 v23, 3, v21
          v_lshlrev_b32 v24, 7, v20
          v_lshl_add_u32 v25, v22, 3, v24
          v_add_u32 v26, {5*512}, v25
          v_add_u32 v27, {6*512}, v24
          v_cmp_eq_u32 vcc, 0, v23
          v_mov_b32 v28, 8192
          v_mov_b32 v30, 0
          v_cndmask_b32 v7, v27, v26, vcc
          v_mov_b32 v31, 0
          v_add_u32 v29, {4*512}, v2''')
    e.lds('ds_write_b64 v28, v[30:31]', 'z')
    e.lds('ds_write_b64 v28, v[30:31] offset:4096', 'z')
    for i in range(4):
        e(f'''v_add_u32 v26, {7*512 + 32*i}, v25
              v_add_u32 v27, {7*512 + 32*((i+1)&3)}, v24
              v_cmp_eq_u32 s[64:65], {i}, v20
              v_cndmask_b32 v26, v27, v26, vcc
              s_nop 0
              v_cndmask_b32 v{3+i}, v28, v29, s[64:65]
              v_cndmask_b32 v{8+i}, v28, v26, s[64:65]''')
    e(f'''v_mov_b32 v12, v{V_L16}
          s_lshr_b32 s65, s{S_W}, 1
          s_lshl_b32 s64, s{S_T}, 1
          s_add_u32 s66, s64, 18
          s_add_u32 s64, s64, s65
          s_lshl_b32 s64, s64, 16
          s_and_b32 s65, s{S_W}, 1
          s_lshl_b32 s65, s65, 12
          s_add_u32 s64, s64, s65
          s_add_u32 s64, s64, {WS_KVP}''')
    for t in pair_addr(e, 's66'):
        e(t)
    stamp(e, 6)
    spin(e, SRD_WS, 2)
    stamp(e, 7)
    stamp_reg(e, 14)
    ring = [32, 48, 224, 240]
    SUM = R.acc(4, 0)

    def pload(rt):
        d = SUM if rt == 0 else ring[(rt - 1) % 4]
        for k in range(4):
            e.vm(f'buffer_load_dwordx4 {vr(d+4*k,4)}, v12, {WS}, s64 offen offset:{1024*k} sc1', ('p', rt))
        e('s_add_u32 s64, s64, 8192')
    for rt in range(5):
        pload(rt)
    for rt in range(1, 8):
        e.wait(vm=('p', rt))
        d = ring[(rt - 1) % 4]
        for r in range(0, 16, 2):
            e(f'v_pk_add_f32 {vr(SUM+r,2)}, {vr(SUM+r,2)}, {vr(d+r,2)}')
        if rt + 4 < 8:
            pload(rt + 4)
    e(f's_lshl_b32 s64, s{S_W}, 11\nv_add_u32 v13, s64, v2')
    for k in range(4):
        e(f'v_cvt_pk_bf16_f32 v{SUM+4*k}, v{SUM+4*k}, v{SUM+4*k+1}\nv_cvt_pk_bf16_f32 v{SUM+4*k+1}, v{SUM+4*k+2}, v{SUM+4*k+3}')
        e.lds(f'ds_write_b64 v13, {vr(SUM+4*k,2)} offset:{512*k}', 'tw')
    e.wait(lg='*')
    e('s_barrier')
    stamp(e, 13)
    e(f's_mul_i32 s65, s{S_T}, 5\ns_add_u32 s65, s65, 54')
    h_base(e, 64, 65)
    YO = R.acc(9, 0)
    YT = R.acc(4, 0)

    def aread(h):
        g, i = h >> 2, h & 3
        d = 16 + 8 * (h & 1)
        e.lds(f'ds_read_b64 {vr(d,2)}, v2 offset:{4096*g+512*i}', ('a', h))
        e.lds(f'ds_read_b64 {vr(d+2,2)}, v{3+i} offset:{4096*g}', ('a', h))
        e.lds(f'ds_read_b64 {vr(d+4,2)}, v7 offset:{4096*g+32*i}', ('a', h))
        e.lds(f'ds_read_b64 {vr(d+6,2)}, v{8+i} offset:{4096*g}', ('a', h))
    aread(0)
    for h in range(8):
        g, i = h >> 2, h & 3
        if h < 7:
            aread(h + 1)
        e.wait(lg=('a', h))
        d = 16 + 8 * (h & 1)
        D = 32 if (h & 1) == 0 else 224
        for rb in range(4):
            B_ = vr(R.acc(5*g + i, rb), 4)
            e(f'v_mfma_f32_16x16x32_bf16 {vr(D+8*rb+4,4)}, {vr(d+4,4)}, {B_}, 0')
            e(f'v_mfma_f32_16x16x32_bf16 {vr(D+8*rb,4)}, {vr(d,4)}, {B_}, 0')
        e('s_nop 0')
        for rb in range(4):
            e(f'v_add_f32 v{D+8*rb+5}, {hex(EPS6)}, v{D+8*rb+5}')
            if rb == 0:
                e('s_nop 1')
            elif rb < 3:
                e('s_nop 0')
        for rb in range(4):
            e(f'v_rcp_f32 v{D+8*rb+5}, v{D+8*rb+5}')
        for rb in range(4):
            n = D + 8 * rb
            for r in range(4):
                e(f'v_mul_f32 v{n+r}, v{n+r}, v{n+5}')
            o = R.acc(5*g + (i & ~1), rb) + 2 * (h & 1)
            e(f'v_cvt_pk_bf16_f32 v{o}, v{n}, v{n+1}\nv_cvt_pk_bf16_f32 v{o+1}, v{n+2}, v{n+3}')
            if h & 1:
                e(f'v_mul_f32 v{n+4}, v{n+4}, v{n+5}')
                e.vm(f'buffer_store_dwordx4 {vr(o-2,4)}, v12, {WS}, s64 offen offset:{1024*rb} sc1', 'os')
                e(f'v_cvt_pk_bf16_f32 v{YO+4*rb+(h>>1)}, v{YT+rb}, v{n+4}')
            else:
                e(f'v_mul_f32 v{YT+rb}, v{n+4}, v{n+5}')
        if h & 1:
            e('s_add_u32 s64, s64, 4096')
    for rb in range(4):
        e.vm(f'buffer_store_dwordx4 {vr(YO+4*rb,4)}, v12, {WS}, s64 offen offset:{1024*rb} sc1', 'os')
    e(f'v_mov_b32 v{V_L16}, v12\nv_add_u32 v{V_L16+1}, 4096, v12')
    stamp(e, 14)
    stamp_reg(e, 63)
    publish(e, 'os', [12, 13], [14, 15])


def p2_role(e):
    global V_PA, V_PD, V_L16
    stamp_reg(e, 31)
    e(f'v_mov_b32 v6, v{V_L16}\nv_mov_b32 v7, v{V_L16+1}')
    V_PA, V_PD, V_L16 = 18, 19, 6
    for jj in range(4):
        e(f's_xor_b32 s64, s{S_W}, {jj}\ns_lshl_b32 s64, s64, 10\nv_add_u32 v{2+jj}, s64, v6')
    for k in range(3):
        e(f'''v_add_u32 v20, {64*k}, v0
              v_mul_u32_u24 v21, 205, v20
              v_lshrrev_b32 v21, 11, v21
              v_mul_u32_u24 v22, 10, v21
              v_sub_u32 v22, v20, v22
              v_mul_u32_u24 v23, 1280, v21
              v_lshl_add_u32 v{8+k}, v22, 4, v23
              v_mul_u32_u24 v23, 336, v21
              v_lshl_add_u32 v{11+k}, v22, 5, v23''')
    e(f'''v_cmp_gt_u32 vcc, 32, v0
          v_mov_b32 v20, {OOB}
          s_lshl_b32 s64, s{S_R}, 2
          v_cndmask_b32 v10, v20, v10, vcc
          s_add_u32 s64, s64, s{S_W}
          s_mul_i32 s70, s64, {16*1280}
          s_mul_i32 s64, s{S_CT}, 160
          s_add_u32 s70, s70, s64
          s_lshr_b32 s71, s{S_R}, 2
          s_lshl_b32 s71, s71, 5
          v_lshrrev_b32 v{V_PA}, 1, v0
          v_min_u32 v{V_PA}, 17, v{V_PA}
          v_add_lshl_u32 v{V_PA}, v{V_PA}, s71, 7''')
    stamp(e, 15)
    spin(e, SRD_WS, 2)
    stamp(e, 16)
    RING = 4

    def hloads(i):
        d = 32 + 16 * (i % RING)
        sd = SRD_Z if i == 13 else SRD_WS
        fs = [('m', lambda jj=jj: e.vm(f'buffer_load_dwordx4 {vr(d+4*jj,4)}, v{2+jj}, s[{sd}:{sd+3}], s{S_HO} offen sc1', ('h', i))) for jj in range(4)]
        fs.append(('s', lambda: e(f's_add_u32 s{S_HO}, s{S_HO}, {(2 if i == 13 else 4)*4096}')))
        return fs
    for i in range(RING - 1):
        for k, f in hloads(i):
            f()
    e(f'''v_lshrrev_b32 v{V_PA}, 4, v0
          s_add_u32 s71, s71, 26
          v_add_lshl_u32 v{V_PA}, v{V_PA}, s71, 7''')
    AF, AS = 96, 156
    W = Weaver(e)
    for i in range(19):
        d = 32 + 16 * (i % RING)
        wf, wd = w2_reg(i)
        for jj in range(4):
            for bb in range(5):
                b = bb if (jj & 1) == 0 else 4 - bb

                def m(i=i, jj=jj, b=b, d=d, wf=wf, wd=wd):
                    assert ('h', i) not in e.vmq and ('w2', i) not in e.vmq
                    acc = vr(AF + (jj*5 + b) * 4, 4) if i < 14 else ar(AS + (jj*5 + b) * 4, 4)
                    c = '0' if i in (0, 14) else acc
                    e(f'v_mfma_f32_16x16x32_bf16 {acc}, {vr(wd+4*b,4,wf)}, {vr(d+4*jj,4)}, {c}')
                W.main(m)
        p = 20 * i
        W.add('wait', 's', p - 1, lambda i=i: e.wait(vm=[('h', i), ('w2', i)]), due=p - 1)
        if i == 8:
            poll_items(e, W, 'ld', p, 38, SRD_WS, 2) if False else None
        if i + RING - 1 < 19:
            if i + RING - 1 == 14:
                slow, back = e.label('L_slow'), e.label('L_back')
                W.add('ld', 's', p, lambda: e.wait(vm='poll'))
                W.add('ld', 'v', p, lambda: e(f'v_cmp_gt_u32 vcc, 2, v{V_PD}'))
                W.add('ld', 's', p, lambda slow=slow, back=back: e(f's_cbranch_vccnz {slow}\n{back}:'), gap=2)
                e.cold.append((slow, back, SRD_WS, 2))
            for k, (kind, f) in enumerate(hloads(i + RING - 1)):
                W.add('ld', kind, p + 4 * k, f, due=p + 18)
        if i == 9:
            W.add('ld', 'm', p + 18, lambda: e.vm(f'buffer_load_dword v{V_PD}, v{V_PA}, {WS}, 0 offen sc1', 'poll'), due=p + 18)
        if i in (2, 4, 6):
            for k, (kind, f) in enumerate(w2_loads(e, 16 + (i - 2) // 2)):
                W.add('l2', kind, p + 2 + 8 * k, f, due=p + 58)
        if i == 16:
            for k in range(3):
                W.add('l2', 'm', p + 2 + 4 * k, lambda k=k: e.vm(f'buffer_load_dwordx4 {vr(176+4*k,4)}, v{8+k}, s[{SRD_X}:{SRD_X+3}], s70 offen', 'xr'))
        if STAMPS and i in (1, 7, 14):
            W.add('st', 's', p, lambda i=i: stamp(e, {1: 17, 7: 18, 14: 19}[i]), due=p)
    W.run()
    print('p2 forced', W.forced, W.left_over, file=sys.stderr)
    e('s_nop 7')
    stamp(e, 20)
    for jj in range(1, 4):
        e(f's_xor_b32 s64, s{S_W}, {jj}\ns_mul_i32 s64, s64, 15360\ns_add_u32 s64, s64, {(jj-1)*5120}\nv_add_u32 v{2+jj}, s64, v6\nv_add_u32 v{14+jj}, 61440, v{2+jj}')
    for part in range(2):
        for jj in range(1, 4):
            for b in range(5):
                src = vr(AF+(jj*5+b)*4, 4) if part == 0 else ar(AS+(jj*5+b)*4, 4)
                e.lds(f'ds_write_b128 v{(2 if part == 0 else 14)+jj}, {src} offset:{1024*b}', 'rw')
    e(f's_mul_i32 s64, s{S_W}, 15360\nv_add_u32 v2, s64, v6\nv_add_u32 v14, 61440, v2')
    F, Sx = AF, 32
    for r in range(20):
        e(f'v_accvgpr_read_b32 v{Sx+r}, a{AS+r}')
    e.wait(lg='*')
    e('s_barrier')
    for part in range(2):
        dst = AF + 20 if part == 0 else 192
        tot = AF if part == 0 else Sx
        for k in range(15):
            e.lds(f'ds_read_b128 {vr(dst+4*k,4)}, v{2 if part == 0 else 14} offset:{1024*k}', ('rr', part, k // 5))
        for jj in range(3):
            e.wait(lg=('rr', part, jj))
            for r in range(0, 20, 2):
                e(f'v_pk_add_f32 {vr(tot+r,2)}, {vr(tot+r,2)}, {vr(dst+20*jj+r,2)}')
    stamp(e, 21)
    e(f'''s_mul_i32 s64, s{S_W}, 5376
          s_add_u32 s64, s64, 122880
          v_and_b32 v20, 15, v0
          v_mul_u32_u24 v20, 336, v20
          v_lshrrev_b32 v21, 4, v0
          v_lshl_add_u32 v20, v21, 4, v20
          v_add_u32 v20, s64, v20''')
    for b in range(5):
        t = 52 + 4 * b
        for r in range(4):
            e(f'v_mul_f32 v{t+r}, {hex(NLOG2E)}, v{F+4*b+r}')
        for r in range(4):
            e(f'v_exp_f32 v{t+r}, v{t+r}')
        for r in range(4):
            e(f'v_mul_f32 v{F+4*b+r}, v{F+4*b+r}, v{Sx+4*b+r}')
        for r in range(4):
            e(f'v_add_f32 v{t+r}, 1.0, v{t+r}')
        for r in range(4):
            e(f'v_rcp_f32 v{t+r}, v{t+r}')
        e('s_nop 0')
        for r in range(4):
            e(f'v_mul_f32 v{t+r}, v{F+4*b+r}, v{t+r}')
        e.lds(f'ds_write_b128 v20, {vr(t,4)} offset:{64*b}', 'ow')
    for k in range(3):
        e(f'v_add_u32 v{11+k}, s64, v{11+k}')
    e.wait(lg='*')
    for k in range(3):
        e.lds(f'ds_read_b128 {vr(72+8*k,4)}, v{11+k}', ('or', k))
        e.lds(f'ds_read_b128 {vr(76+8*k,4)}, v{11+k} offset:16', ('or', k))
    e.wait(vm='xr')
    for k in range(3):
        e.wait(lg=('or', k))
        for q in range(4):
            x = 176 + 4 * k + q
            y = 72 + 8 * k + 2 * q
            e(f'''v_lshlrev_b32 v22, 16, v{x}
                  v_and_b32 v23, 0xffff0000, v{x}
                  v_add_f32 v22, v22, v{y}
                  v_add_f32 v23, v23, v{y+1}
                  v_cvt_pk_bf16_f32 v{x}, v22, v23''')
        e.vm(f'buffer_store_dwordx4 {vr(176+4*k,4)}, v{8+k}, s[{SRD_A}:{SRD_A+3}], s70 offen', 'out')
    stamp(e, 22)
    stamp_out(e)
    e('s_endpgm')
    cold_code(e)
    V_PA, V_PD, V_L16 = 38, 39, 59


HEAD = '''; LayerNorm -> (linear attention -> wo) * silu(SwiGLU FFN) + x, one launch, 256 workgroups, one per CU.
; Kernarg (pointers): 0 x, 8 wqkv, 16 wo, 24 unused, 32 w_gate, 40 w_up, 48 w_down, 56 out, 64 debug, 72 ws
'''


def gemm_role(e, kind):
    R = Role(kind)
    p1_role_setup(e, R)
    p1_main(e, R)
    e('s_nop 7')
    stamp(e, 4)
    {'ffn': ffn_epilogue, 'kv': kv_epilogue, 'q': q_epilogue}[kind](e, R)


def build():
    e = E()
    e.cold = []
    entry(e)
    e(f's_cmp_eq_u32 s{S_ROLE}, 3\ns_cbranch_scc1 L_helper')
    p1_setup(e)
    st = list(e.vmq)
    e(f's_cmp_eq_u32 s{S_ROLE}, 1\ns_cbranch_scc1 L_kv\ns_cmp_eq_u32 s{S_ROLE}, 2\ns_cbranch_scc1 L_q')
    gemm_role(e, 'ffn')
    c0, e.cold = e.cold, []
    e('L_p2:')
    e.vmq, e.lgq = [], []
    p2_role(e)
    e.cold = c0
    cold_code(e)
    for kind in ('kv', 'q'):
        e(f'L_{kind}:')
        e.vmq, e.lgq, e.sreg = list(st), [], 63
        gemm_role(e, kind)
        e('s_branch L_p2')
        cold_code(e)
    e('L_helper:')
    e.vmq, e.lgq, e.sreg = [], [], 63
    helper_role(e)
    e('s_branch L_p2')
    e('L_end:')
    e('s_endpgm')
    head = HEAD + f'; @launch grid=(256,1,1) block=(256,1,1) lds={LDS_BYTES}\n'
    head += '.amdgcn_target "amdgcn-amd-amdhsa--gfx950"\n.text\n'
    return head + e.text() + f'''.section .rodata,"a"
.p2align 6
.amdhsa_kernel {KN}
  .amdhsa_next_free_vgpr 512
  .amdhsa_next_free_sgpr 102
  .amdhsa_accum_offset 256
  .amdhsa_group_segment_fixed_size 0
  .amdhsa_kernarg_size 80
  .amdhsa_user_sgpr_count 2
  .amdhsa_user_sgpr_kernarg_segment_ptr 1
  .amdhsa_system_sgpr_workgroup_id_x 1
.end_amdhsa_kernel
'''


if __name__ == '__main__':
    out = sys.argv[1]
    for a in sys.argv[2:]:
        if a == 'stamps':
            STAMPS = True
        else:
            k, v = a.split('=')
            OPT[k] = float(v) if '.' in v else int(v)
    open(out, 'w').write(build())
```

```python
import subprocess, sys
KN = 'recurrent_scan__linear_attn_block__swiglu_ffn__prompt_kernel'
def mk(out, idx, op, opts):
    subprocess.run([sys.executable, 'gen2.py', '_p.s'] + opts, check=True, stderr=subprocess.DEVNULL)
    t = open('_p.s').read()
    t = t.replace('; @launch grid=(256,1,1) block=(256,1,1) lds=163840', f'; @launch kernel={KN} grid=(256,1,1) block=(256,1,1) lds=163840\n; @launch kernel=final_kernel grid=(1,1,1) block=(64,1,1) lds=0')
    red = ''.join(f'  v_readlane_b32 s22, v4, {l}\n  v_readlane_b32 s23, v5, {l}\n  s_nop 1\n  s_min_u32 s16, s16, s22\n  s_{op}_u32 s17, s17, s23\n' for l in range(64))
    fin = f'''.globl final_kernel
.p2align 8
.type final_kernel,@function
final_kernel:
  s_cmp_ge_u32 s2, 1
  s_cbranch_scc1 final_end
  s_load_dwordx2 s[4:5], s[0:1], 72
  s_waitcnt lgkmcnt(0)
  s_mov_b32 s12, s4
  s_mov_b32 s13, s5
  s_mov_b32 s14, 0x10000000
  s_mov_b32 s15, 0x00020000
  v_lshlrev_b32 v1, 8, v0
  v_mov_b32 v4, -1
  v_mov_b32 v5, {0 if op == 'max' else -1}
  s_mov_b32 s20, 0x8000000
  s_mov_b32 s21, 16
L_fr:
  buffer_load_dword v2, v1, s[12:15], s20 offen offset:24
  buffer_load_dword v3, v1, s[12:15], s20 offen offset:{8*idx}
  s_waitcnt vmcnt(0)
  v_min_u32 v4, v4, v2
  v_{op}_u32 v5, v5, v3
  s_add_u32 s20, s20, 16384
  s_sub_u32 s21, s21, 1
  s_cmp_lg_u32 s21, 0
  s_cbranch_scc1 L_fr
  s_mov_b32 s16, -1
  s_mov_b32 s17, {0 if op == 'max' else -1}
  s_nop 1
{red}
  s_sub_u32 s17, s17, s16
  s_min_u32 s17, s17, 5000
  s_mul_i32 s17, s17, 10
  s_add_u32 s17, s17, 10000
L_fs:
  s_memrealtime s[18:19]
  s_waitcnt lgkmcnt(0)
  s_sub_u32 s18, s18, s16
  s_cmp_lt_u32 s18, s17
  s_cbranch_scc1 L_fs
final_end:
  s_endpgm
'''
    t = t.replace('.section .rodata,"a"', fin + '.section .rodata,"a"') + '''.p2align 6
.amdhsa_kernel final_kernel
  .amdhsa_next_free_vgpr 32
  .amdhsa_next_free_sgpr 64
  .amdhsa_accum_offset 32
  .amdhsa_group_segment_fixed_size 0
  .amdhsa_kernarg_size 80
  .amdhsa_user_sgpr_count 2
  .amdhsa_user_sgpr_kernarg_segment_ptr 1
  .amdhsa_system_sgpr_workgroup_id_x 1
.end_amdhsa_kernel
'''
    open(out, 'w').write(t)
mk('q0.s', 3, 'max', ['minstamps'])
mk('q1.s', 31, 'max', ['minstamps'])
mk('q2.s', 4, 'max', ['stamps'])
mk('q3.s', 6, 'max', ['stamps'])
mk('q4.s', 16, 'max', ['stamps'])
mk('q5.s', 16, 'min', ['stamps'])
```

```python
import subprocess, sys
KN = 'recurrent_scan__linear_attn_block__swiglu_ffn__prompt_kernel'
def mk(out, idx, op, opts):
    subprocess.run([sys.executable, 'gen2.py', '_p.s'] + opts, check=True, stderr=subprocess.DEVNULL)
    t = open('_p.s').read()
    t = t.replace('; @launch grid=(256,1,1) block=(256,1,1) lds=163840', f'; @launch kernel={KN} grid=(256,1,1) block=(256,1,1) lds=163840\n; @launch kernel=final_kernel grid=(1,1,1) block=(64,1,1) lds=0')
    red = ''.join(f'  v_readlane_b32 s22, v4, {l}\n  v_readlane_b32 s23, v5, {l}\n  s_nop 1\n  s_min_u32 s16, s16, s22\n  s_{op}_u32 s17, s17, s23\n' for l in range(64))
    fin = f'''.globl final_kernel
.p2align 8
.type final_kernel,@function
final_kernel:
  s_cmp_ge_u32 s2, 1
  s_cbranch_scc1 final_end
  s_load_dwordx2 s[4:5], s[0:1], 72
  s_waitcnt lgkmcnt(0)
  s_mov_b32 s12, s4
  s_mov_b32 s13, s5
  s_mov_b32 s14, 0x10000000
  s_mov_b32 s15, 0x00020000
  v_lshlrev_b32 v1, 8, v0
  v_mov_b32 v4, -1
  v_mov_b32 v5, {0 if op == 'max' else -1}
  s_mov_b32 s20, 0x8000000
  s_mov_b32 s21, 16
L_fr:
  buffer_load_dword v2, v1, s[12:15], s20 offen offset:24
  buffer_load_dword v3, v1, s[12:15], s20 offen offset:{8*idx}
  s_waitcnt vmcnt(0)
  v_min_u32 v4, v4, v2
  v_{op}_u32 v5, v5, v3
  s_add_u32 s20, s20, 16384
  s_sub_u32 s21, s21, 1
  s_cmp_lg_u32 s21, 0
  s_cbranch_scc1 L_fr
  s_mov_b32 s16, -1
  s_mov_b32 s17, {0 if op == 'max' else -1}
  s_nop 1
{red}
  s_sub_u32 s17, s17, s16
  s_min_u32 s17, s17, 5000
  s_mul_i32 s17, s17, 10
  s_add_u32 s17, s17, 10000
L_fs:
  s_memrealtime s[18:19]
  s_waitcnt lgkmcnt(0)
  s_sub_u32 s18, s18, s16
  s_cmp_lt_u32 s18, s17
  s_cbranch_scc1 L_fs
final_end:
  s_endpgm
'''
    t = t.replace('.section .rodata,"a"', fin + '.section .rodata,"a"') + '''.p2align 6
.amdhsa_kernel final_kernel
  .amdhsa_next_free_vgpr 32
  .amdhsa_next_free_sgpr 64
  .amdhsa_accum_offset 32
  .amdhsa_group_segment_fixed_size 0
  .amdhsa_kernarg_size 80
  .amdhsa_user_sgpr_count 2
  .amdhsa_user_sgpr_kernarg_segment_ptr 1
  .amdhsa_system_sgpr_workgroup_id_x 1
.end_amdhsa_kernel
'''
    open(out, 'w').write(t)
for k, v in enumerate(sys.argv[1:]):
    mk('h%d.s' % k, 31, 'max', ['minstamps'] + [a for a in v.split(',') if a != 'base'])
```

```python
import subprocess, sys
KN = 'recurrent_scan__linear_attn_block__swiglu_ffn__prompt_kernel'
def mk(out, idx, op, opts, g='gen2'):
    subprocess.run([sys.executable, 'gen/%s.py' % g, '_p.s'] + opts, check=True, stderr=subprocess.DEVNULL)
    t = open('_p.s').read()
    t = t.replace('; @launch grid=(256,1,1) block=(256,1,1) lds=163840', f'; @launch kernel={KN} grid=(256,1,1) block=(256,1,1) lds=163840\n; @launch kernel=final_kernel grid=(1,1,1) block=(64,1,1) lds=0')
    red = ''.join(f'  v_readlane_b32 s22, v4, {l}\n  v_readlane_b32 s23, v5, {l}\n  s_nop 1\n  s_min_u32 s16, s16, s22\n  s_{op}_u32 s17, s17, s23\n' for l in range(64))
    fin = f'''.globl final_kernel
.p2align 8
.type final_kernel,@function
final_kernel:
  s_cmp_ge_u32 s2, 1
  s_cbranch_scc1 final_end
  s_load_dwordx2 s[4:5], s[0:1], 72
  s_waitcnt lgkmcnt(0)
  s_mov_b32 s12, s4
  s_mov_b32 s13, s5
  s_mov_b32 s14, 0x10000000
  s_mov_b32 s15, 0x00020000
  v_lshlrev_b32 v1, 8, v0
  v_mov_b32 v4, -1
  v_mov_b32 v5, {0 if op == 'max' else -1}
  s_mov_b32 s20, 0x8000000
  s_mov_b32 s21, 16
L_fr:
  buffer_load_dword v2, v1, s[12:15], s20 offen offset:24
  buffer_load_dword v3, v1, s[12:15], s20 offen offset:{8*idx}
  s_waitcnt vmcnt(0)
  v_min_u32 v4, v4, v2
  v_{op}_u32 v5, v5, v3
  s_add_u32 s20, s20, 16384
  s_sub_u32 s21, s21, 1
  s_cmp_lg_u32 s21, 0
  s_cbranch_scc1 L_fr
  s_mov_b32 s16, -1
  s_mov_b32 s17, {0 if op == 'max' else -1}
  s_nop 1
{red}
  s_sub_u32 s17, s17, s16
  s_min_u32 s17, s17, 5000
  s_mul_i32 s17, s17, 10
  s_add_u32 s17, s17, 10000
L_fs:
  s_memrealtime s[18:19]
  s_waitcnt lgkmcnt(0)
  s_sub_u32 s18, s18, s16
  s_cmp_lt_u32 s18, s17
  s_cbranch_scc1 L_fs
final_end:
  s_endpgm
'''
    t = t.replace('.section .rodata,"a"', fin + '.section .rodata,"a"') + '''.p2align 6
.amdhsa_kernel final_kernel
  .amdhsa_next_free_vgpr 32
  .amdhsa_next_free_sgpr 64
  .amdhsa_accum_offset 32
  .amdhsa_group_segment_fixed_size 0
  .amdhsa_kernarg_size 80
  .amdhsa_user_sgpr_count 2
  .amdhsa_user_sgpr_kernarg_segment_ptr 1
  .amdhsa_system_sgpr_workgroup_id_x 1
.end_amdhsa_kernel
'''
    open(out, 'w').write(t)
for k, v in enumerate(sys.argv[1:]):
    g, v = v.split(':') if ':' in v else ('gen2', v)
    mk('h%d.s' % k, 31, 'max', ['minstamps'] + [a for a in v.split(',') if a != 'base'], g)
```

```python
import subprocess, sys
KN = 'recurrent_scan__linear_attn_block__swiglu_ffn__prompt_kernel'
def mk(out, idx, op, opts, g='gen2', q=0):
    subprocess.run([sys.executable, 'gen/%s.py' % g, '_p.s'] + opts, check=True, stderr=subprocess.DEVNULL)
    t = open('_p.s').read()
    t = t.replace('; @launch grid=(256,1,1) block=(256,1,1) lds=163840', f'; @launch kernel={KN} grid=(256,1,1) block=(256,1,1) lds=163840\n; @launch kernel=final_kernel grid=(1,1,1) block=(64,1,1) lds=0')
    red = ''.join(f'  v_readlane_b32 s22, v4, {l}\n  v_readlane_b32 s23, v5, {l}\n  s_nop 1\n  s_min_u32 s16, s16, s22\n  s_{op}_u32 s17, s17, s23\n' for l in range(64))
    fin = f'''.globl final_kernel
.p2align 8
.type final_kernel,@function
final_kernel:
  s_cmp_ge_u32 s2, 1
  s_cbranch_scc1 final_end
  s_load_dwordx2 s[4:5], s[0:1], 72
  s_waitcnt lgkmcnt(0)
  s_mov_b32 s12, s4
  s_mov_b32 s13, s5
  s_mov_b32 s14, 0x10000000
  s_mov_b32 s15, 0x00020000
  v_lshlrev_b32 v1, 8, v0
  v_mov_b32 v4, -1
  v_mov_b32 v5, {0 if op == 'max' else -1}
  s_mov_b32 s20, 0x8000000
  s_mov_b32 s21, 16
L_fr:
  buffer_load_dword v2, v1, s[12:15], s20 offen offset:24
  buffer_load_dword v3, v1, s[12:15], s20 offen offset:{8*idx}
  s_waitcnt vmcnt(0)
  v_min_u32 v4, v4, v2
  v_{op}_u32 v5, v5, v3
  s_add_u32 s20, s20, 16384
  s_sub_u32 s21, s21, 1
  s_cmp_lg_u32 s21, 0
  s_cbranch_scc1 L_fr
  s_mov_b32 s16, -1
  s_mov_b32 s17, {0 if op == 'max' else -1}
  s_nop 1
{red}
  s_sub_u32 s17, s17, s16
  s_mul_i32 s25, s16, 0x9e3779b1
  s_lshr_b32 s25, s25, 26
  s_cmp_lt_u32 s25, {abs(q)}
  s_cselect_b32 s17, {4000 if q > 0 else 0}, s17
  s_min_u32 s17, s17, 5000
  s_mul_i32 s17, s17, 10
  s_add_u32 s17, s17, 10000
L_fs:
  s_memrealtime s[18:19]
  s_waitcnt lgkmcnt(0)
  s_sub_u32 s18, s18, s16
  s_cmp_lt_u32 s18, s17
  s_cbranch_scc1 L_fs
final_end:
  s_endpgm
'''
    t = t.replace('.section .rodata,"a"', fin + '.section .rodata,"a"') + '''.p2align 6
.amdhsa_kernel final_kernel
  .amdhsa_next_free_vgpr 32
  .amdhsa_next_free_sgpr 64
  .amdhsa_accum_offset 32
  .amdhsa_group_segment_fixed_size 0
  .amdhsa_kernarg_size 80
  .amdhsa_user_sgpr_count 2
  .amdhsa_user_sgpr_kernarg_segment_ptr 1
  .amdhsa_system_sgpr_workgroup_id_x 1
.end_amdhsa_kernel
'''
    open(out, 'w').write(t)
for k, v in enumerate(sys.argv[1:]):
    v, ix = v.split('#') if '#' in v else (v, 31)
    v, q = v.split('@') if '@' in v else (v, 0)
    g, v = v.split(':') if ':' in v else ('gen2', v)
    mk('h%d.s' % k, int(ix), 'max', ['minstamps' if int(ix) in (0, 3, 31) else 'stamps'] + [a for a in v.split(',') if a != 'base'], g, int(q))
```
